```python
import torch

def _softmax(x, axis=-1):
    return torch.softmax(x, dim=axis)
def _gelu(x):
    return torch.nn.functional.gelu(x, approximate="tanh")
def _silu(x):
    return torch.nn.functional.silu(x)
def _sigmoid(x):
    return torch.sigmoid(x)
def _layernorm(x, axis=-1, eps=1e-5):
    m = x.mean(dim=axis, keepdim=True)
    v = x.var(dim=axis, keepdim=True, unbiased=False)
    return (x - m) / torch.sqrt(v + eps)
def _scatter_add(tgt, idx, src, axis=0):
    return tgt.clone().index_add_(axis, idx, src)
def _segment_sum(src, seg, n):
    out = torch.zeros((n,) + src.shape[1:], dtype=src.dtype)
    return out.index_add_(0, seg, src)
def _pad(x, pw):
    flat = tuple(v for pair in reversed(pw) for v in pair)
    return torch.nn.functional.pad(x, flat)

kernel_name = 'parallel_sum__gqa_block_cached__glu_gated_glu__decode'

def setup_inputs():

    _w = (lambda a: (lambda t: t.to(torch.bfloat16) if t.is_floating_point() else t)(torch.as_tensor(a)))
    def _A_setup():
        B, Sq, D = 1, 1, 576
        Hq, Hkv, Sk, Dh = 32, 16, 65536, 128
        assert Hq % Hkv == 0, (Hq, Hkv)
        return {
            "x": _w((lambda *s: torch.randn(*s, dtype=torch.bfloat16) * 0.05)(B, Sq, D)),
            "k_cache": _w((lambda *s: torch.randn(*s, dtype=torch.bfloat16) * 3.2)(B, Hkv, Sk, Dh)),
            "v_cache": _w((lambda *s: torch.randn(*s, dtype=torch.bfloat16) * 1.6)(B, Hkv, Sk, Dh)),
            "wq": _w((lambda *s: torch.randn(*s, dtype=torch.bfloat16) * 3.2)(D, Hq * Dh) * (D ** -0.5)),
            "wo": _w((lambda *s: torch.randn(*s, dtype=torch.bfloat16) * 1.6)(Hq * Dh, D) * ((Hq * Dh) ** -0.5)),
        }
    _A_in = _A_setup()

    def _B_setup():
        B, S, D, F = 1, 1, 576, 4608
        return {
            "x": _w((lambda *s: torch.randn(*s, dtype=torch.bfloat16) * 0.05)(B, S, D)),
            "w_gate": _w((lambda *s: torch.randn(*s, dtype=torch.bfloat16) * 0.1)(D, F)),
            "w_up": _w((lambda *s: torch.randn(*s, dtype=torch.bfloat16) * 0.05)(D, F)),
            "w_down": _w((lambda *s: torch.randn(*s, dtype=torch.bfloat16) * 0.05)(F, D)),
        }
    _B_in = _B_setup()

    return {
        "A_x": _A_in["x"],
        "A_k_cache": _A_in["k_cache"],
        "A_v_cache": _A_in["v_cache"],
        "A_wq": _A_in["wq"],
        "A_wo": _A_in["wo"],
        "B_x": _B_in["x"],
        "B_w_gate": _B_in["w_gate"],
        "B_w_up": _B_in["w_up"],
        "B_w_down": _B_in["w_down"],
    }

def reference(A_x, A_k_cache, A_v_cache, A_wq, A_wo, B_x, B_w_gate, B_w_up, B_w_down):
    def _A_ref(x, k_cache, v_cache, wq, wo):
        B, Sq, D = x.shape
        Hq, Dh = 32, 128
        Hkv = k_cache.shape[1]
        rep = Hq // Hkv
        q = (lambda x, *d: x.permute(*d))((x @ wq).reshape(B, Sq, Hq, Dh), 0, 2, 1, 3)
        k = (lambda x, n, axis: torch.repeat_interleave(x, n, dim=axis))(k_cache, rep, axis=1)
        v = (lambda x, n, axis: torch.repeat_interleave(x, n, dim=axis))(v_cache, rep, axis=1)
        scores = torch.einsum("bhqd,bhkd->bhqk", q, k) * (Dh ** -0.5)
        p = _softmax(scores, axis=-1)
        o = torch.einsum("bhqk,bhkd->bhqd", p, v)
        return (lambda x, *d: x.permute(*d))(o, 0, 2, 1, 3).reshape(B, Sq, Hq * Dh) @ wo

    def _B_ref(x, w_gate, w_up, w_down):
        g = torch.einsum("bsd,df->bsf", x, w_gate)
        u = torch.einsum("bsd,df->bsf", x, w_up)
        h = _sigmoid(g) * u
        return torch.einsum("bsf,fd->bsd", h, w_down)

    x = A_x
    xn = _layernorm(x, axis=-1)
    return x + _A_ref(xn, A_k_cache, A_v_cache, A_wq, A_wo) + _B_ref(xn, B_w_gate, B_w_up, B_w_down)
```

```python
import re

TRANS = ('v_exp_f32', 'v_log_f32', 'v_rcp_f32', 'v_rsq_f32', 'v_sqrt_f32', 'v_sin_f32', 'v_cos_f32', 'v_rcp_iflag_f32')

def regs_of(tok):
    tok = tok.strip()
    tok = re.sub(r'^-', '', tok)
    m = re.fullmatch(r'abs\((.*)\)|\|(.*)\|', tok)
    if m: tok = m.group(1) or m.group(2)
    m = re.fullmatch(r'([vsa])(\d+)', tok)
    if m: return {(m.group(1), int(m.group(2)))}
    m = re.fullmatch(r'([vsa])\[(\d+):(\d+)\]', tok)
    if m: return {(m.group(1), i) for i in range(int(m.group(2)), int(m.group(3)) + 1)}
    if tok in ('vcc', 'vcc_lo', 'vcc_hi'): return {('vcc', 0)}
    if tok in ('exec', 'exec_lo', 'exec_hi'): return {('exec', 0)}
    if tok == 'm0': return {('m0', 0)}
    return set()

class I:
    def __init__(self, text):
        self.text = text
        t = text.split(';')[0].strip()
        self.label = None
        self.op = None
        self.W = set(); self.R = set()
        self.kind = None
        if not t or t.startswith('.'):
            self.kind = 'dir'; return
        if t.endswith(':'):
            self.label = t[:-1]; self.kind = 'label'; return
        p = t.split(None, 1)
        self.op = op = p[0]
        rest = p[1] if len(p) > 1 else ''
        ops = [o.strip() for o in re.split(r',(?![^\[]*\])', rest)] if rest else []
        mods = ''
        if ops:
            q = ops[-1].split(None, 1)
            ops[-1] = q[0]
            mods = q[1] if len(q) > 1 else ''
        self.ops = ops; self.mods = mods
        self.dpp = bool(re.search(r'quad_perm|row_|wave_', mods)) or op.endswith('_dpp')
        self.target = None
        base = re.sub(r'_(e32|e64|dpp|sdwa)$', '', op)
        self.base = base
        R = lambda l: set().union(*[regs_of(x) for x in l]) if l else set()
        if op.startswith('v_mfma'):
            self.kind = 'mfma'; self.W = regs_of(ops[0]); self.A = regs_of(ops[1]); self.B = regs_of(ops[2]); self.C = regs_of(ops[3])
            self.R = self.A | self.B | self.C
            self.passes = 4 if '16x16x32' in op else (8 if '32x32x16' in op else 16)
        elif op.startswith('v_'):
            self.kind = 'valu'
            if base.startswith('v_cmpx'):
                self.W = regs_of(ops[0]) | {('exec', 0)}; self.R = R(ops[1:])
            elif base.startswith('v_permlane') and 'swap' in base:
                self.W = R(ops[:2]); self.R = R(ops[:2])
            elif base in ('v_add_co_u32', 'v_sub_co_u32', 'v_addc_co_u32', 'v_subb_co_u32', 'v_div_scale_f32', 'v_mad_u64_u32'):
                self.W = R(ops[:2]); self.R = R(ops[2:])
            elif base == 'v_nop':
                pass
            else:
                self.W = regs_of(ops[0]); self.R = R(ops[1:])
                if base in ('v_fmac_f32', 'v_dot2c_f32_bf16', 'v_writelane_b32') or self.dpp: self.R |= self.W
            self.trans = base in TRANS
        elif op.startswith(('buffer_', 'global_', 'flat_')):
            self.kind = 'vmem'
            if 'load' in op and ' lds' not in ' ' + mods:
                self.W = regs_of(ops[0]); self.R = R(ops[1:])
                if 'd16' in op: self.R |= self.W
            elif 'atomic' in op:
                if op.startswith('buffer_'):
                    self.R = R(ops); self.W = regs_of(ops[0]) if 'sc0' in mods else set()
                else:
                    if 'sc0' in mods: self.W = regs_of(ops[0]); self.R = R(ops[1:])
                    else: self.R = R(ops)
            else:
                self.R = R(ops)
            self.store_data = set()
            if 'store' in op and ('x4' in op or 'x3' in op):
                self.store_data = regs_of(ops[0]) if op.startswith('buffer_') else regs_of(ops[1])
        elif op.startswith('ds_'):
            self.kind = 'ds'
            if 'read' in op or 'rtn' in op or 'permute' in op or 'swizzle' in op:
                self.W = regs_of(ops[0]); self.R = R(ops[1:])
            else:
                self.R = R(ops)
        elif op.startswith('s_'):
            self.kind = 'salu'
            if op in ('s_branch',) or op.startswith('s_cbranch'):
                self.target = ops[0]
                if 'vcc' in op: self.R = {('vcc', 0)}
                if 'exec' in op: self.R = {('exec', 0)}
            elif op.startswith(('s_cmp', 's_bitcmp', 's_waitcnt', 's_nop', 's_barrier', 's_endpgm', 's_sleep', 's_setprio')):
                self.R = R(ops)
            elif 'saveexec' in op:
                self.W = regs_of(ops[0]) | {('exec', 0)}; self.R = R(ops[1:]) | {('exec', 0)}
            else:
                self.W = regs_of(ops[0]) if ops else set(); self.R = R(ops[1:])
        else:
            raise ValueError('unknown instr ' + text)

    def states(self):
        if self.kind in ('dir', 'label'): return 0
        if self.op == 's_nop': return int(self.ops[0], 0) + 1
        return 1

def vonly(s): return {r for r in s if r[0] in ('v', 'a')}
def sonly(s): return {r for r in s if r[0] in ('s', 'vcc')}

def need(p, c):
    n = 0
    if p.kind == 'valu':
        wv = vonly(p.W); ws = sonly(p.W)
        if c.kind == 'mfma' and wv & c.R: n = max(n, 2)
        if c.kind == 'valu':
            if c.dpp and wv & c.R: n = max(n, 2)
            if c.base.startswith('v_permlane') and wv & c.R: n = max(n, 2)
            if c.base in ('v_readlane_b32', 'v_readfirstlane_b32') and wv & c.R: n = max(n, 1)
            if p.trans and wv & c.R and not c.trans: n = max(n, 1)
            if p.trans and wv & c.R and c.trans: n = max(n, 1)
            rs = set(c.R)
            if c.base == 'v_cndmask_b32' and len(c.ops) == 3: rs |= {('vcc', 0)}
            if ws & rs: n = max(n, 2)
            if c.base in ('v_readlane_b32', 'v_writelane_b32') and ws & regs_of(c.ops[2]): n = max(n, 4)
            if c.base == 'v_div_fmas_f32' and ('vcc', 0) in p.W: n = max(n, 4)
            if ('exec', 0) in p.W:
                if c.dpp: n = max(n, 5)
                if c.base in ('v_readlane_b32', 'v_readfirstlane_b32', 'v_writelane_b32') or c.base.startswith('v_permlane'): n = max(n, 4)
        if c.kind == 'mfma' and ('exec', 0) in p.W: n = max(n, 4)
        if c.kind == 'vmem' and ws & c.R: n = max(n, 5)
        if c.kind == 'salu' and ws & c.R and c.target is None: n = max(n, 1)
    if p.kind == 'mfma':
        t = {2: 0, 4: 1, 8: 2, 16: 3}[p.passes]
        if c.kind == 'mfma':
            if p.W & (c.A | c.B): n = max(n, [5, 8, 12, 20][t])
            if p.W & c.C:
                if p.W == c.C and p.passes == c.passes: n = max(n, [2, 0, 0, 0][t])
                else: n = max(n, [4, 6, 10, 18][t])
            elif p.W & c.W: n = max(n, [4, 6, 10, 18][t])
        elif c.kind in ('valu', 'vmem', 'ds'):
            if p.W & (c.R | c.W): n = max(n, [5, 8, 12, 20][t])
        if c.kind == 'valu' and p.C & c.W: n = max(n, [1, 3, 7, 15][t])
    if p.kind == 'vmem' and getattr(p, 'store_data', None):
        if p.store_data & c.W: n = max(n, 2)
    if p.kind == 'salu' and ('m0', 0) in p.W and c.kind == 'vmem' and 'lds' in c.mods: n = max(n, 1)
    return n

def fix(text, verbose=False):
    lines = text.split('\n')
    total = 0
    for _ in range(2000):
        ins = [I(l) for l in lines]
        labels = {x.label: i for i, x in enumerate(ins) if x.label}
        jumps = {}
        for i, x in enumerate(ins):
            if x.kind == 'salu' and x.target in labels: jumps.setdefault(labels[x.target], []).append(i)
        def preds(i):
            out = []
            if i > 0:
                y = ins[i - 1]
                if not (y.kind == 'salu' and y.op in ('s_branch', 's_endpgm', 's_setpc_b64')): out.append(i - 1)
            if ins[i].kind == 'label': out += jumps.get(i, [])
            return out
        fixes = {}
        for i, c in enumerate(ins):
            if c.kind in ('dir', 'label', None): continue
            worst = 0
            stack = [(j, 0) for j in preds(i)]
            seen = {}
            while stack:
                j, dist = stack.pop()
                if j in seen and seen[j] <= dist: continue
                seen[j] = dist
                p = ins[j]
                if p.kind not in ('dir', 'label'):
                    k = need(p, c) - dist
                    if k > worst: worst = k
                nd = dist + p.states()
                if nd < 20:
                    for q in preds(j): stack.append((q, nd))
            if worst > 0: fixes[i] = worst
        if not fixes: break
        out = []
        last = -100
        for i, l in enumerate(lines):
            if i in fixes and i - last > 24:
                out.append(f'  s_nop {fixes[i]-1}')
                total += fixes[i]; last = i
                if verbose: print('pad', fixes[i], 'before', l.strip())
            out.append(l)
        lines = out
    else:
        raise RuntimeError('hazard fix did not converge')
    return '\n'.join(lines), total
```

```python
import sys
from hazard import fix

NAME = 'parallel_sum__gqa_block_cached__glu_gated_glu__decode_kernel'
HEADER = open('parallel_sum__gqa_block_cached__glu_gated_glu__decode.s.ref').read().split('; Override launch')[0]

REC = 8192
R_Q, R_GU, R_O, R_ML, R_YG, R_Y2 = 0, 1024, 3328, 4352, 4608, 6912
L_Q, L_O, L_ML, L_Y = 0, 1024, 9216, 9472
LDS_BYTES = 9472 + 2048
SENT = 0xFFFFFFFF
LOG2E = 0x3FB8AA3B
SCALE = 0x3DB504F3
INV576 = 0x3AE38E39
EPS = 0x3727C5AC
SPIN = 1 << 18

def gen(D=4, ts=False, lowprio=True):
    o = []
    def A(s):
        for l in s.strip('\n').split('\n'):
            l = l.strip()
            if not l: continue
            o.append(l if l.endswith(':') else '  ' + l)
    uid = [0]
    def lab(p):
        uid[0] += 1
        return f'L_{p}_{uid[0]}'

    sX, sK, sV, sWQ, sWO, sGATE, sUP, sDOWN, sOUT, sDBG, sWS = 4, 6, 8, 10, 12, 16, 18, 20, 22, 24, 26
    rK, rV, rX, rW, rWS, rDBG = 28, 32, 36, 40, 44, 48
    sWave, sHK, sS = 3, 52, 53
    sT, sRnd, sTmp, sTmp2, sCnt, sRec, sGrp = 54, 55, 56, 57, 58, 59, 60
    sHI, sL2E, sSC = 62, 64, 65
    sTS = 70
    def srd(r): return f's[{r}:{r+3}]'
    vL, vKo, vVo = 0, 4, 5
    vM = 8; vQ = 12; vO = 28; vS = 32; vB = 36; vB2 = 40
    vm, vmL, vl = 44, 45, 46
    vT = 47
    vD = 60; vD1 = 56
    vW = 64
    vSl = 100
    NV = max(vSl + 32 * D, 200)
    def v4(r): return f'v[{r}:{r+3}]'
    def v2(r): return f'v[{r}:{r+1}]'

    nts = [0]
    def stamp():
        if ts:
            A(f's_memrealtime s[{sTS+2*nts[0]}:{sTS+2*nts[0]+1}]');
        nts[0] += 1

    def allred16(op, r):
        for m in ('quad_perm:[1,0,3,2]', 'quad_perm:[2,3,0,1]', 'row_half_mirror', 'row_mirror'):
            A(f'{op}_dpp v{r}, v{r}, v{r} {m} row_mask:0xf bank_mask:0xf')
    def allred8(op, rs):
        for m in ('quad_perm:[1,0,3,2]', 'quad_perm:[2,3,0,1]', 'row_half_mirror'):
            for r in rs:
                A(f'{op}_dpp v{r}, v{r}, v{r} {m} row_mask:0xf bank_mask:0xf')
    def allredrows(op, rs, ts_):
        for sw in ('v_permlane16_swap_b32', 'v_permlane32_swap_b32'):
            for r, t in zip(rs, ts_): A(f'v_mov_b32 v{t}, v{r}')
            for r, t in zip(rs, ts_): A(f'{sw} v{r}, v{t}')
            for r, t in zip(rs, ts_): A(f'{op} v{r}, v{r}, v{t}')
    def bf16r(dst, src):
        A(f'v_cvt_pk_bf16_f32 v{dst}, v{src}, v{src}\nv_lshlrev_b32 v{dst}, 16, v{dst}')
    def diag(dst, src):
        for w in range(4): A(f'v_and_b32 v{dst+w}, v{src}, v{vM+w}')
    def check_sent(regs, t, retry):
        rs = list(regs)
        A(f'v_max3_u32 v{t}, v{rs[0]}, v{rs[1]}, v{rs[2]}')
        k = 3
        while k + 1 < len(rs):
            A(f'v_max3_u32 v{t}, v{t}, v{rs[k]}, v{rs[k+1]}'); k += 2
        if k < len(rs): A(f'v_max_u32 v{t}, v{t}, v{rs[k]}')
        done = lab('got')
        A(f'v_cmp_eq_u32 vcc, -1, v{t}\ns_cbranch_vccz {done}')
        A(f's_sub_u32 s{sCnt}, s{sCnt}, 1\ns_cbranch_scc0 {retry}\n{done}:')

    def kv_loads(d):
        r = vSl + 32 * d
        for j in range(4): A(f'buffer_load_dwordx4 {v4(r+4*j)}, v{vKo}, {srd(rK)}, s{sT} offen offset:{64*j} nt')
        for j in range(4): A(f'buffer_load_dwordx4 {v4(r+16+4*j)}, v{vVo}, {srd(rV)}, s{sT} offen offset:{256*j} nt')
        A(f's_add_u32 s{sT}, s{sT}, 32768')

    A(f'{NAME}:')
    A(f'''
    s_cmp_ge_u32 s2, 256
    s_cbranch_scc1 L_end
    s_load_dwordx16 s[4:19], s[0:1], 0
    s_load_dwordx8 s[20:27], s[0:1], 64
    ''')
    stamp()
    A(f'''
    v_lshrrev_b32 v1, 6, v0
    v_and_b32 v{vL}, 63, v0
    v_readfirstlane_b32 s{sWave}, v1
    s_setprio 1
    s_lshr_b32 s{sHK}, s2, 4
    s_and_b32 s{sS}, s2, 15
    s_lshl_b32 s{sRec}, s2, 13
    s_lshl_b32 s{sGrp}, s{sHK}, 17
    s_mov_b32 s{sHI}, 0
    s_mov_b32 s{sHI+1}, -1
    s_mov_b32 s{sL2E}, {LOG2E:#x}
    s_mov_b32 s{sSC}, {SCALE:#x}
    v_and_b32 v1, 15, v{vL}
    v_lshrrev_b32 v2, 4, v{vL}
    s_lshl_b32 s{sT}, s{sWave}, 12
    v_lshlrev_b32 v{vKo}, 8, v1
    v_lshl_add_u32 v{vKo}, v2, 4, v{vKo}
    v_lshlrev_b32 v{vVo}, 10, v2
    v_lshl_add_u32 v{vVo}, v1, 4, v{vVo}
    s_mul_i32 s{sTmp}, s{sS}, 36
    v_add_u32 v3, s{sTmp}, v2
    v_lshlrev_b32 v6, 1, v3
    v_lshlrev_b32 v7, 4, v{vL}
    v_lshlrev_b32 v{vT+6}, 2, v{vL}
    s_lshl_b32 s{sTmp2}, s2, 20
    s_waitcnt lgkmcnt(0)
    s_mov_b32 s{rX}, s{sX}
    s_mov_b32 s{rX+1}, s{sX+1}
    s_mov_b32 s{rX+2}, 1152
    s_mov_b32 s{rX+3}, 0x20000
    s_add_u32 s{rK}, s{sK}, s{sTmp2}
    s_addc_u32 s{rK+1}, s{sK+1}, 0
    s_mov_b32 s{rK+2}, 0x100000
    s_mov_b32 s{rK+3}, 0x20000
    s_add_u32 s{rV}, s{sV}, s{sTmp2}
    s_addc_u32 s{rV+1}, s{sV+1}, 0
    s_mov_b32 s{rV+2}, 0x100000
    s_mov_b32 s{rV+3}, 0x20000
    s_mov_b32 s{rWS}, s{sWS}
    s_mov_b32 s{rWS+1}, s{sWS+1}
    s_mov_b32 s{rWS+2}, {256*REC}
    s_mov_b32 s{rWS+3}, 0x20000
    s_mov_b32 s{rDBG}, s{sDBG}
    s_mov_b32 s{rDBG+1}, s{sDBG+1}
    s_mov_b32 s{rDBG+2}, 256
    s_mov_b32 s{rDBG+3}, 0x20000
    s_cmp_eq_u32 s{sWave}, 7
    s_cbranch_scc1 L_w7
    ''')
    vX4, vX1 = 48, 52
    vXD = vQ
    A(f'buffer_load_dwordx4 {v4(vX4)}, v7, {srd(rX)}, 0 offen')
    A(f'buffer_load_dword v{vX1}, v{vT+6}, {srd(rX)}, 0 offen offset:1024')
    for j in range(9): A(f'buffer_load_ushort v{vXD+j}, v6, {srd(rX)}, 0 offen offset:{8*j}')
    A(f'''
    s_cmp_eq_u32 s{sWave}, 0
    s_cbranch_scc0 L_wgu
    s_setprio 3
    s_mov_b32 s{rW}, s{sWQ}
    s_mov_b32 s{rW+1}, s{sWQ+1}
    s_mov_b32 s{rW+2}, {576*8192}
    s_mov_b32 s{rW+3}, 0x20000
    v_lshlrev_b32 v3, 13, v3
    v_lshl_add_u32 v3, v1, 4, v3
    s_lshl_b32 s{sTmp}, s{sHK}, 9
    ''')
    for j in range(9):
        A(f'buffer_load_dwordx4 {v4(vSl+8*j)}, v3, {srd(rW)}, s{sTmp} offen nt')
        A(f'buffer_load_dwordx4 {v4(vSl+8*j+4)}, v3, {srd(rW)}, s{sTmp} offen offset:256 nt')
        if j < 8: A(f's_add_u32 s{sTmp}, s{sTmp}, {4*8192}')
    for k in range(4): A(f'v_mov_b32 v{vO+k}, -1')
    A(f's_add_u32 s{sTmp}, s{sRec}, 1024')
    for k in range(7):
        if k == 4: A(f's_add_u32 s{sTmp}, s{sTmp}, 4096')
        A(f'buffer_store_dwordx4 {v4(vO)}, v7, {srd(rWS)}, s{sTmp} offen offset:{1024*(k%4)} sc1')
    A(f's_waitcnt vmcnt(25)\ns_branch L_ln')
    A(f'''
    L_wgu:
    s_sub_u32 s{sTmp}, s{sWave}, 1
    s_and_b32 s{sTmp2}, s{sTmp}, 1
    s_lshr_b32 s{sTmp}, s{sTmp}, 1
    s_cmp_eq_u32 s{sTmp2}, 0
    s_cselect_b32 s{rW}, s{sGATE}, s{sUP}
    s_cselect_b32 s{rW+1}, s{sGATE+1}, s{sUP+1}
    s_mov_b32 s{rW+2}, {576*9216}
    s_mov_b32 s{rW+3}, 0x20000
    s_mulk_i32 s{sTmp2}, 1152
    s_lshl_b32 s{sCnt}, s{sTmp}, 9
    s_add_u32 s{sTmp2}, s{sTmp2}, s{sCnt}
    s_add_u32 s{sTmp2}, s{sTmp2}, s{sRec}
    s_add_u32 s66, s{sTmp2}, {R_GU}
    s_cmp_eq_u32 s{sTmp}, 2
    s_cselect_b32 s67, 4, 16
    s_lshl_b32 s{sTmp}, s{sTmp}, 8
    s_mul_i32 s{sTmp2}, s{sHK}, 576
    s_add_u32 s{sTmp}, s{sTmp}, s{sTmp2}
    v_mul_u32_u24 v3, 9216, v3
    v_lshl_add_u32 v3, v1, 4, v3
    v_cmp_gt_u32 vcc, s67, v1
    v_mov_b32 v{vT}, 0x7ff00000
    v_cndmask_b32 v3, v{vT}, v3, vcc
    ''')
    for j in range(9):
        A(f'buffer_load_dwordx4 {v4(vW+4*j)}, v3, {srd(rW)}, s{sTmp} offen nt')
        if j < 8: A(f's_add_u32 s{sTmp}, s{sTmp}, {4*9216}')
    for d in range(D): kv_loads(d)
    A(f's_waitcnt vmcnt({9+8*D})')
    A('L_ln:')
    f = 28
    for k in range(4):
        A(f'v_lshlrev_b32 v{f+2*k}, 16, v{vX4+k}\nv_and_b32 v{f+2*k+1}, 0xffff0000, v{vX4+k}')
    A(f'v_lshlrev_b32 v{f+8}, 16, v{vX1}\nv_and_b32 v{f+9}, 0xffff0000, v{vX1}')
    a, b = 38, 39
    A(f'v_add_f32 v{a}, v{f}, v{f+1}\nv_add_f32 v{b}, v{f+2}, v{f+3}')
    for k in (4, 6, 8): A(f'v_add_f32 v{a}, v{a}, v{f+k}\nv_add_f32 v{b}, v{b}, v{f+k+1}')
    A(f'v_add_f32 v{a}, v{a}, v{b}')
    allred16('v_add_f32', a); allredrows('v_add_f32', [a], [b])
    A(f'v_mul_f32 v{a}, {INV576:#x}, v{a}')
    for k in range(10): A(f'v_sub_f32 v{f+k}, v{f+k}, v{a}')
    A(f'v_cndmask_b32 v{f+8}, v{f+8}, 0, s[{sHI}:{sHI+1}]\nv_cndmask_b32 v{f+9}, v{f+9}, 0, s[{sHI}:{sHI+1}]')
    c_ = 40
    A(f'v_mul_f32 v{b}, v{f}, v{f}\nv_mul_f32 v{c_}, v{f+1}, v{f+1}')
    for k in (2, 4, 6, 8): A(f'v_fmac_f32 v{b}, v{f+k}, v{f+k}\nv_fmac_f32 v{c_}, v{f+k+1}, v{f+k+1}')
    A(f'v_add_f32 v{b}, v{b}, v{c_}')
    allred16('v_add_f32', b); allredrows('v_add_f32', [b], [c_])
    A(f'v_mul_f32 v{b}, {INV576:#x}, v{b}')
    bf16r(a, a); bf16r(b, b)
    A(f'v_add_f32 v{b}, {EPS:#x}, v{b}'); bf16r(b, b)
    A(f'v_sqrt_f32 v{b}, v{b}'); bf16r(b, b)
    A(f'v_rcp_f32 v{b}, v{b}')
    for j in range(9): A(f'v_lshlrev_b32 v{vXD+j}, 16, v{vXD+j}')
    for j in range(9): A(f'v_sub_f32 v{vXD+j}, v{vXD+j}, v{a}')
    for j in range(9): A(f'v_cvt_pk_bf16_f32 v{vXD+j}, v{vXD+j}, v{vXD+j}')
    for j in range(9): A(f'v_lshlrev_b32 v{vXD+j}, 16, v{vXD+j}')
    for j in range(9): A(f'v_mul_f32 v{vXD+j}, v{vXD+j}, v{b}')
    for j in range(9): A(f'v_cvt_pk_bf16_f32 v{vXD+j}, v{vXD+j}, v{vXD+j}')
    def masks():
        A(f'''
        v_and_b32 v{vT}, 1, v{vL}
        v_lshlrev_b32 v{vT}, 4, v{vT}
        v_mov_b32 v{vT+1}, 0xffff
        v_lshlrev_b32 v{vT}, v{vT}, v{vT+1}
        v_bfe_u32 v{vT+1}, v{vL}, 1, 2
        ''')
        for w in range(4):
            A(f'v_cmp_eq_u32 vcc, {w}, v{vT+1}\nv_cndmask_b32 v{vM+w}, 0, v{vT}, vcc')
    masks()
    A(f's_cmp_eq_u32 s{sWave}, 0\ns_cbranch_scc0 L_gu2')
    A('s_waitcnt vmcnt(7)')
    for j in range(9):
        bb = vB if j % 2 == 0 else vB2
        diag(bb, vXD + j)
        A(f'v_mfma_f32_16x16x32_bf16 {v4(vD)}, {v4(bb)}, {v4(vSl+8*j)}, {"0" if j == 0 else v4(vD)}')
        A(f'v_mfma_f32_16x16x32_bf16 {v4(vD1)}, {v4(bb)}, {v4(vSl+8*j+4)}, {"0" if j == 0 else v4(vD1)}')
    A(f'''
    v_and_b32 v1, 15, v{vL}
    v_lshlrev_b32 v1, 5, v1
    v_bfe_u32 v2, v{vL}, 4, 1
    v_lshl_add_u32 v1, v2, 4, v1
    v_lshrrev_b32 v2, 5, v{vL}
    v_lshl_add_u32 v1, v2, 9, v1
    ''')
    for k in range(4): A(f'v_cndmask_b32 v{vD+k}, v{vD+k}, v{vD1+k}, s[{sHI}:{sHI+1}]')
    A(f'''
    buffer_store_dwordx4 {v4(vD)}, v1, {srd(rWS)}, s{sRec} offen sc1
    v_mov_b32 v2, 0
    v_mov_b32 v3, 1
    s_waitcnt vmcnt(0)
    ''')
    stamp()
    A(f'''
    s_mov_b64 exec, 1
    buffer_store_byte v3, v2, {srd(rDBG)}, s2 offen sc1
    s_lshl_b32 s{sTmp}, s{sHK}, 4
    s_mov_b32 s{sCnt}, {SPIN}
    L_pollq:
    buffer_load_dwordx4 {v4(vS)}, v2, {srd(rDBG)}, s{sTmp} offen sc1
    s_waitcnt vmcnt(0)
    v_and_b32 v{vS}, v{vS}, v{vS+1}
    v_and_b32 v{vS+2}, v{vS+2}, v{vS+3}
    v_and_b32 v{vS}, v{vS}, v{vS+2}
    v_cmp_eq_u32 vcc, 0x01010101, v{vS}
    s_cbranch_vccnz L_gotq
    s_sub_u32 s{sCnt}, s{sCnt}, 1
    s_cbranch_scc0 L_pollq
    L_gotq:
    s_mov_b64 exec, -1
    s_mov_b32 s{sTmp}, s{sGrp}
    ''')
    stamp()
    for p in range(16):
        A(f'buffer_load_dwordx4 {v4(vSl+4*p)}, v1, {srd(rWS)}, s{sTmp} offen sc1')
        if p < 15: A(f's_add_u32 s{sTmp}, s{sTmp}, {REC}')
    A(f'v_lshrrev_b32 v1, 1, v1')
    for p in range(1, 16):
        A(f's_waitcnt vmcnt({15-p})')
        for k in range(4): A(f'v_add_f32 v{vSl+k}, v{vSl+k}, v{vSl+4*p+k}')
    A(f'''
    v_cvt_pk_bf16_f32 v{vS}, v{vSl}, v{vSl+1}
    v_cvt_pk_bf16_f32 v{vS+1}, v{vSl+2}, v{vSl+3}
    ds_write_b64 v1, {v2(vS)} offset:{L_Q}
    ''')
    for d in range(D): kv_loads(d)
    A(f'''
    s_waitcnt lgkmcnt(0)
    s_setprio 1
    s_barrier
    s_branch L_main
    ''')
    A(f'L_gu2:\ns_waitcnt vmcnt({8*D})')
    for j in range(9):
        bb = vB if j % 2 == 0 else vB2
        diag(bb, vXD + j)
        A(f'v_mfma_f32_16x16x32_bf16 {v4(vD)}, {v4(bb)}, {v4(vW+4*j)}, {"0" if j == 0 else v4(vD)}')
    A(f'''
    v_and_b32 v1, 15, v{vL}
    v_cmp_gt_u32 vcc, s67, v1
    v_lshlrev_b32 v1, 5, v1
    v_bfe_u32 v2, v{vL}, 4, 1
    v_lshl_add_u32 v1, v2, 4, v1
    v_mov_b32 v2, 0x7ff00000
    v_cndmask_b32 v1, v2, v1, vcc
    v_cndmask_b32 v1, v1, v2, s[{sHI}:{sHI+1}]
    ''')
    for k in range(4): A(f'v_min_u32 v{vD+k}, -2, v{vD+k}')
    A(f'''
    s_barrier
    buffer_store_dwordx4 {v4(vD)}, v1, {srd(rWS)}, s66 offen sc1
    s_branch L_main
    L_w7:
    ''')
    for d in range(D): kv_loads(d)
    masks()
    A('s_barrier')
    A(f'''
    L_main:
    v_bfe_u32 v1, v{vL}, 3, 1
    v_lshrrev_b32 v2, 4, v{vL}
    v_lshlrev_b32 v1, 8, v1
    v_lshl_add_u32 v1, v2, 4, v1
    ''')
    for j in range(4): A(f'ds_read_b128 {v4(vQ+4*j)}, v1 offset:{L_Q+64*j}')
    stamp()
    for k in range(4): A(f'v_mov_b32 v{vO+k}, 0')
    A(f'''
    v_mov_b32 v{vm}, 0xf149f2ca
    v_mov_b32 v{vl}, 0
    v_mul_f32 v{vmL}, s{sL2E}, v{vm}
    s_mov_b32 s{sRnd}, {32//D - 1}
    s_waitcnt lgkmcnt(0)
    L_loop:
    ''')
    ool = []
    t0, t1, tm = vT, vT + 1, vT + 2
    for d in range(D):
        r = vSl + 32 * d
        def wait(a_, b_, tag):
            if a_ == b_:
                A(f's_waitcnt vmcnt({a_})')
            else:
                A(f's_cmp_eq_u32 s{sRnd}, 0\ns_cbranch_scc1 L_{tag}l{d}\ns_waitcnt vmcnt({a_})\nL_{tag}b{d}:')
                ool.append(f'L_{tag}l{d}:\ns_waitcnt vmcnt({b_})\ns_branch L_{tag}b{d}')
        wait(8*(D-1)+4, 8*(D-1-d)+4, 'wk')
        for j in range(4):
            A(f'v_mfma_f32_16x16x32_bf16 {v4(vS)}, {v4(r+4*j)}, {v4(vQ+4*j)}, {"0" if j == 0 else v4(vS)}')
        def rnd():
            A(f'''
            v_cvt_pk_bf16_f32 v{t0}, v{vS}, v{vS+1}
            v_cvt_pk_bf16_f32 v{t1}, v{vS+2}, v{vS+3}
            v_lshlrev_b32 v{vS}, 16, v{t0}
            v_and_b32 v{vS+1}, 0xffff0000, v{t0}
            v_lshlrev_b32 v{vS+2}, 16, v{t1}
            v_and_b32 v{vS+3}, 0xffff0000, v{t1}
            ''')
        rnd()
        for k in range(4): A(f'v_mul_f32 v{vS+k}, s{sSC}, v{vS+k}')
        rnd()
        A(f'''
        v_max3_f32 v{tm}, v{vS}, v{vS+1}, v{vS+2}
        v_max_f32 v{tm}, v{tm}, v{vS+3}
        v_cmp_gt_f32 vcc, v{tm}, v{vm}
        s_cbranch_vccnz L_upd{d}
        L_updb{d}:
        ''')
        ool.append(f'''
        L_upd{d}:
        v_mov_b32 v{t0}, v{tm}
        v_permlane16_swap_b32 v{tm}, v{t0}
        v_max_f32 v{tm}, v{tm}, v{t0}
        v_mov_b32 v{t0}, v{tm}
        v_permlane32_swap_b32 v{tm}, v{t0}
        v_max3_f32 v{vm}, v{vm}, v{tm}, v{t0}
        v_mul_f32 v{t0}, s{sL2E}, v{vm}
        v_sub_f32 v{t1}, v{vmL}, v{t0}
        v_exp_f32 v{t1}, v{t1}
        v_mov_b32 v{vmL}, v{t0}
        v_mul_f32 v{vl}, v{vl}, v{t1}
        v_mul_f32 v{vO}, v{vO}, v{t1}
        v_mul_f32 v{vO+1}, v{vO+1}, v{t1}
        v_mul_f32 v{vO+2}, v{vO+2}, v{t1}
        v_mul_f32 v{vO+3}, v{vO+3}, v{t1}
        s_branch L_updb{d}
        ''')
        for k in range(4): A(f'v_fma_f32 v{vS+k}, v{vS+k}, s{sL2E}, -v{vmL}')
        for k in range(4): A(f'v_exp_f32 v{vS+k}, v{vS+k}')
        A(f'v_add_f32 v{t0}, v{vS}, v{vS+1}\nv_add_f32 v{t1}, v{vS+2}, v{vS+3}')
        for k in range(4): A(f'v_cvt_pk_bf16_f32 v{vS+k}, v{vS+k}, v{vS+k}')
        A(f'v_add_f32 v{vl}, v{vl}, v{t0}\nv_add_f32 v{vl}, v{vl}, v{t1}')
        diag(vB, vS)
        wait(8*(D-1), 8*(D-1-d), 'wv')
        for k in range(4):
            bb = vB if k % 2 == 0 else vB2
            if k < 3: diag(vB2 if k % 2 == 0 else vB + 0, vS + k + 1) if False else None
            if k > 0: diag(bb, vS + k)
            A(f'v_mfma_f32_16x16x32_bf16 {v4(vO)}, {v4(r+16+4*k)}, {v4(bb)}, {v4(vO)}')
        A(f's_cmp_eq_u32 s{sRnd}, 0\ns_cbranch_scc1 L_norf{d}')
        kv_loads(d)
        A(f'L_norf{d}:')
    A(f'''
    s_sub_u32 s{sRnd}, s{sRnd}, 1
    s_cbranch_scc0 L_loop
    s_branch L_post
    ''')
    for b_ in ool: A(b_)
    A('L_post:')
    stamp()
    allredrows('v_add_f32', [vl], [t0])
    A(f'''
    v_lshlrev_b32 v1, 4, v{vL}
    s_lshl_b32 s{sTmp}, s{sWave}, 10
    v_add_u32 v2, s{sTmp}, v1
    ds_write_b128 v2, {v4(vO)} offset:{L_O}
    v_bfe_u32 v3, v{vL}, 3, 1
    v_lshlrev_b32 v3, 3, v3
    s_lshl_b32 s{sTmp}, s{sWave}, 4
    v_add_u32 v2, s{sTmp}, v3
    v_mov_b32 v{vS}, v{vmL}
    v_mov_b32 v{vS+1}, v{vl}
    ds_write_b64 v2, {v2(vS)} offset:{L_ML}
    s_cmp_ge_u32 s{sWave}, 4
    s_cbranch_scc0 L_g1
    s_waitcnt lgkmcnt(0)
    s_barrier
    s_cmp_eq_u32 s{sWave}, 4
    s_cbranch_scc0 L_end
    ''')
    stamp()
    if ts: A('s_waitcnt lgkmcnt(0)')
    for i in range(8): A(f'ds_read_b64 {v2(vW+2*i)}, v3 offset:{L_ML+16*i}')
    for i in range(8): A(f'ds_read_b128 {v4(vSl+4*i)}, v1 offset:{L_O+1024*i}')
    A(f'''
    v_lshrrev_b32 v2, 4, v{vL}
    v_and_b32 v6, 7, v{vL}
    v_lshlrev_b32 v2, 7, v2
    v_lshl_add_u32 v2, v6, 4, v2
    v_lshl_add_u32 v2, v3, 6, v2
    s_waitcnt lgkmcnt(8)
    v_max3_f32 v{vS}, v{vW}, v{vW+2}, v{vW+4}
    v_max3_f32 v{vS}, v{vS}, v{vW+6}, v{vW+8}
    v_max3_f32 v{vS}, v{vS}, v{vW+10}, v{vW+12}
    v_max_f32 v{vS}, v{vS}, v{vW+14}
    ''')
    for i in range(8): A(f'v_sub_f32 v{vW+2*i}, v{vW+2*i}, v{vS}')
    for i in range(8): A(f'v_exp_f32 v{vW+2*i}, v{vW+2*i}')
    A(f'v_mul_f32 v{vS+1}, v{vW}, v{vW+1}')
    for i in range(1, 8): A(f'v_fmac_f32 v{vS+1}, v{vW+2*i}, v{vW+2*i+1}')
    A('s_waitcnt lgkmcnt(0)')
    for k in range(4): A(f'v_mul_f32 v{vO+k}, v{vW}, v{vSl+k}')
    for i in range(1, 8):
        for k in range(4): A(f'v_fmac_f32 v{vO+k}, v{vW+2*i}, v{vSl+4*i+k}')
    for k in range(4): A(f'v_min_u32 v{vO+k}, -2, v{vO+k}')
    A(f'''
    v_min_u32 v{vS}, -2, v{vS}
    v_min_u32 v{vS+1}, -2, v{vS+1}
    s_add_u32 s{sTmp}, s{sRec}, {R_O}
    buffer_store_dwordx4 {v4(vO)}, v2, {srd(rWS)}, s{sTmp} offen sc1
    s_mov_b64 exec, 0x101
    buffer_store_dwordx2 {v2(vS)}, v3, {srd(rWS)}, s{sTmp} offen offset:{R_ML-R_O} sc1
    ''')
    tsdump = []
    def dump_ts(slot):
        if not ts: return
        A('s_mov_b64 exec, -1')
        stamp_n = 8
        A(f's_memrealtime s[{sTS+14}:{sTS+15}]\ns_waitcnt lgkmcnt(0)')
        A(f's_add_u32 s28, s{sWS}, 0x20000000\ns_addc_u32 s29, s{sWS+1}, 0\ns_mov_b32 s30, 0x100000\ns_mov_b32 s31, 0x20000')
        A(f's_lshl_b32 s{sTmp}, s2, 8\ns_add_u32 s{sTmp}, s{sTmp}, {slot*64}\nv_mov_b32 v1, 0')
        for i in range(8):
            A(f'v_mov_b32 v2, s{sTS+2*i}\nbuffer_store_dword v2, v1, s[28:31], s{sTmp} offen offset:{4*i}')
    dump_ts(1)
    A('s_endpgm')
    vWD, vG, vWO, vP = 100, 136, 148, 180
    A(f'''
    L_g1:
    s_mov_b32 s{rW}, s{sDOWN}
    s_mov_b32 s{rW+1}, s{sDOWN+1}
    s_mov_b32 s{rW+2}, {4608*1152}
    s_mov_b32 s{rW+3}, 0x20000
    v_lshrrev_b32 v1, 3, v{vL}
    v_and_b32 v2, 7, v{vL}
    v_mul_u32_u24 v6, 1152, v1
    v_lshl_add_u32 v6, v2, 4, v6
    v_cmp_gt_u32 vcc, 2, v1
    v_mov_b32 v{vT}, 0x7ff00000
    v_cndmask_b32 v7, v{vT}, v6, vcc
    s_mul_i32 s{sTmp}, s2, {18*1152}
    s_lshl_b32 s{sTmp2}, s{sWave}, 7
    s_add_u32 s{sTmp}, s{sTmp}, s{sTmp2}
    s_add_u32 s{sTmp2}, s{sTmp}, 9216
    s_add_u32 s66, s{sTmp}, 18432
    ''')
    for ci in range(3):
        if ci == 2: A(f's_cmp_eq_u32 s{sWave}, 0\ns_cbranch_scc0 L_nowd')
        for rg, (vo, so) in enumerate((('v6', sTmp), ('v6', sTmp2), ('v7', 66))):
            A(f'buffer_load_dwordx4 {v4(vWD+12*ci+4*rg)}, {vo}, {srd(rW)}, s{so} offen offset:{512*ci} nt')
    A(f'''
    L_nowd:
    v_lshlrev_b32 v6, 13, v2
    v_lshl_add_u32 v6, v1, 2, v6
    v_cndmask_b32 v7, v{vT}, v6, vcc
    s_mul_i32 s{sTmp}, s{sS}, 72
    s_add_u32 s{sTmp}, s{sTmp}, s{sGrp}
    s_add_u32 s{sTmp}, s{sTmp}, {R_GU}
    s_add_u32 s{sTmp2}, s{sTmp}, {8*REC}
    s_mov_b32 s{sCnt}, {SPIN}
    L_pollgu:
    ''')
    for mat in range(2):
        for rg in range(3):
            for hf, so in enumerate((sTmp, sTmp2)):
                A(f'buffer_load_dword v{vG+6*hf+3*mat+rg}, {"v7" if rg == 2 else "v6"}, {srd(rWS)}, s{so} offen offset:{1152*mat+32*rg} sc1')
    A('s_waitcnt vmcnt(0)')
    check_sent(range(vG, vG + 12), vT + 1, 'L_pollgu')
    for k in range(6): A(f'v_add_f32 v{vG+k}, v{vG+k}, v{vG+6+k}')
    allred8('v_add_f32', range(vG, vG + 6))
    for k in range(6): bf16r(vG + k, vG + k)
    for k in range(3): A(f'v_mul_f32 v{vG+k}, s{sL2E}, v{vG+k}')
    for k in range(3): A(f'v_exp_f32 v{vG+k}, -v{vG+k}')
    for k in range(3): A(f'v_add_f32 v{vG+k}, 1.0, v{vG+k}')
    for k in range(3): A(f'v_rcp_f32 v{vG+k}, v{vG+k}')
    for k in range(3): bf16r(vG + k, vG + k)
    for k in range(3): A(f'v_mul_f32 v{vG+k}, v{vG+k}, v{vG+3+k}')
    for k in range(3): A(f'v_cvt_pk_bf16_f32 v{vG+k}, v{vG+k}, v{vG+k}')
    hb = [vB, vB2, vS]
    for k in range(3): diag(hb[k], vG + k)
    A(f'''
    v_bfe_u32 v3, v{vL}, 4, 1
    v_lshlrev_b32 v3, 4, v3
    v_lshl_add_u32 v3, v2, 5, v3
    s_lshl_b32 s{sTmp}, s{sWave}, 8
    s_add_u32 s{sTmp}, s{sTmp}, s{sRec}
    s_add_u32 s{sTmp}, s{sTmp}, {R_YG}
    ''')
    for ci in range(3):
        if ci == 2: A(f's_cmp_eq_u32 s{sWave}, 0\ns_cbranch_scc0 L_g1done')
        for rg in range(3):
            A(f'v_mfma_f32_16x16x32_bf16 {v4(vD)}, {v4(hb[rg])}, {v4(vWD+12*ci+4*rg)}, {"0" if rg == 0 else v4(vD)}')
        for k in range(4): A(f'v_mov_b32 v{vD1+k}, v{vD+k}')
        for k in range(4): A(f'v_permlane32_swap_b32 v{vD+k}, v{vD1+k}')
        for k in range(4): A(f'v_add_f32_dpp v{vO+k}, v{vD1+k}, v{vD+k} row_ror:8 row_mask:0xf bank_mask:0xf')
        for k in range(4): A(f'v_min_u32 v{vO+k}, -2, v{vO+k}')
        A(f's_mov_b64 exec, 0x00ff00ff\nbuffer_store_dwordx4 {v4(vO)}, v3, {srd(rWS)}, s{sTmp} offen offset:{1024*ci} sc1\ns_mov_b64 exec, -1')
    A(f'''
    L_g1done:
    s_waitcnt lgkmcnt(0)
    s_cmp_ge_u32 s{sS}, 9
    s_cbranch_scc1 L_end
    s_cmp_eq_u32 s{sWave}, 1
    s_cbranch_scc0 L_nog2
    ''')
    A(f'''
    v_lshrrev_b32 v6, 4, v{vL}
    v_and_b32 v7, 15, v{vL}
    v_lshlrev_b32 v7, 4, v7
    v_lshl_add_u32 v6, v6, 13, v7
    s_lshl_b32 s{sTmp}, s{sS}, 8
    s_add_u32 s{sTmp}, s{sTmp}, s{sGrp}
    s_add_u32 s66, s{sTmp}, {R_YG}
    s_mov_b32 s{sCnt}, {SPIN}
    L_pollg2:
    s_sleep 8
    s_mov_b32 s{sTmp}, s66
    ''')
    for j in range(4):
        A(f'buffer_load_dwordx4 {v4(vWD+4*j)}, v6, {srd(rWS)}, s{sTmp} offen sc1')
        if j < 3: A(f's_add_u32 s{sTmp}, s{sTmp}, {4*REC}')
    A('s_waitcnt vmcnt(0)')
    check_sent(range(vWD, vWD + 16), vT + 1, 'L_pollg2')
    for j in range(1, 4):
        for k in range(4): A(f'v_add_f32 v{vWD+k}, v{vWD+k}, v{vWD+4*j+k}')
    allredrows('v_add_f32', range(vWD, vWD + 4), range(vWD + 4, vWD + 8))
    for k in range(4): A(f'v_min_u32 v{vWD+k}, -2, v{vWD+k}')
    A(f'''
    s_add_u32 s{sTmp}, s{sRec}, {R_Y2+256}
    s_mov_b64 exec, 0xffff
    buffer_store_dwordx4 {v4(vWD)}, v7, {srd(rWS)}, s{sTmp} offen sc1
    s_mov_b64 exec, -1
    L_nog2:
    s_cmp_eq_u32 s{sWave}, 0
    s_cbranch_scc0 L_noflag
    s_cmp_eq_u32 s{sHK}, s{sS}
    s_cbranch_scc0 L_noflag
    v_lshlrev_b32 v6, 2, v{vL}
    s_mov_b32 s{sCnt}, {SPIN}
    L_pollf:
    buffer_load_dword v7, v6, {srd(rDBG)}, 0 offen sc1
    s_waitcnt vmcnt(0)
    v_cmp_ne_u32 vcc, 0x01010101, v7
    s_cbranch_vccz L_gotf
    s_sub_u32 s{sCnt}, s{sCnt}, 1
    s_cbranch_scc0 L_pollf
    L_gotf:
    v_and_b32 v6, 15, v{vL}
    v_lshlrev_b32 v6, 3, v6
    s_lshl_b32 s{sTmp}, s{sS}, 7
    buffer_load_dwordx2 {v2(vQ)}, v6, {srd(rX)}, s{sTmp} offen
    L_noflag:
    ''')
    A(f'''
    s_mov_b32 s{rW}, s{sWO}
    s_mov_b32 s{rW+1}, s{sWO+1}
    s_mov_b32 s{rW+2}, {4096*1152}
    s_mov_b32 s{rW+3}, 0x20000
    v_mul_u32_u24 v6, 1152, v1
    v_lshl_add_u32 v6, v2, 4, v6
    s_lshl_b32 s{sTmp}, s{sHK}, 2
    s_add_u32 s{sTmp}, s{sTmp}, s{sWave}
    s_mul_i32 s{sTmp}, s{sTmp}, {64*1152}
    s_lshl_b32 s{sTmp2}, s{sS}, 7
    s_add_u32 s{sTmp}, s{sTmp}, s{sTmp2}
    ''')
    if lowprio: A('s_setprio 0')
    for i in range(8):
        A(f'buffer_load_dwordx4 {v4(vWO+4*i)}, v6, {srd(rW)}, s{sTmp} offen nt')
        if i < 7: A(f's_add_u32 s{sTmp}, s{sTmp}, 9216')
    A(f'''
    v_lshlrev_b32 v6, 13, v2
    v_lshl_add_u32 v7, v1, 4, v6
    s_lshl_b32 s{sTmp}, s{sWave}, 8
    s_add_u32 s{sTmp}, s{sTmp}, s{sGrp}
    s_add_u32 s{sTmp}, s{sTmp}, {R_O}
    s_add_u32 s{sTmp2}, s{sTmp}, {8*REC}
    s_lshr_b32 s66, s{sWave}, 1
    s_lshl_b32 s66, s66, 3
    s_add_u32 s66, s66, s{sGrp}
    s_add_u32 s66, s66, {R_ML}
    s_add_u32 s67, s66, {8*REC}
    s_mov_b32 s{sCnt}, {SPIN}
    s_barrier
    s_setprio 3
    ''')
    stamp()
    A(f'''
    L_pollo:
    buffer_load_dwordx2 {v2(vP+16)}, v6, {srd(rWS)}, s66 offen sc1
    buffer_load_dwordx2 {v2(vP+18)}, v6, {srd(rWS)}, s67 offen sc1
    buffer_load_dwordx4 {v4(vP)}, v7, {srd(rWS)}, s{sTmp} offen sc1
    buffer_load_dwordx4 {v4(vP+4)}, v7, {srd(rWS)}, s{sTmp} offen offset:128 sc1
    buffer_load_dwordx4 {v4(vP+8)}, v7, {srd(rWS)}, s{sTmp2} offen sc1
    buffer_load_dwordx4 {v4(vP+12)}, v7, {srd(rWS)}, s{sTmp2} offen offset:128 sc1
    s_waitcnt vmcnt(0)
    ''')
    check_sent(range(vP, vP + 20), vT + 1, 'L_pollo')
    if ts: A(f's_memrealtime s[{sTS+10}:{sTS+11}]')
    mA, lA, mB, lB = vP + 16, vP + 17, vP + 18, vP + 19
    A(f'v_max_f32 v{vT}, v{mA}, v{mB}')
    allred8('v_max_f32', [vT])
    A(f'''
    v_sub_f32 v{mA}, v{mA}, v{vT}
    v_sub_f32 v{mB}, v{mB}, v{vT}
    v_exp_f32 v{mA}, v{mA}
    v_exp_f32 v{mB}, v{mB}
    v_mul_f32 v{lA}, v{mA}, v{lA}
    v_fmac_f32 v{lA}, v{mB}, v{lB}
    ''')
    for k in range(8): A(f'v_mul_f32 v{vP+k}, v{mA}, v{vP+k}')
    for k in range(8): A(f'v_fmac_f32 v{vP+k}, v{mB}, v{vP+8+k}')
    allred8('v_add_f32', [lA] + list(range(vP, vP + 8)))
    A(f'v_rcp_f32 v{lA}, v{lA}')
    for k in range(8): A(f'v_mul_f32 v{vP+k}, v{lA}, v{vP+k}')
    for k in range(8): A(f'v_cvt_pk_bf16_f32 v{vP+k}, v{vP+k}, v{vP+k}')
    for k in range(8):
        bb = vB if k % 2 == 0 else vB2
        diag(bb, vP + k)
        A(f'v_mfma_f32_16x16x32_bf16 {v4(vD)}, {v4(bb)}, {v4(vWO+4*k)}, {"0" if k == 0 else v4(vD)}')
    A(f'''
    v_lshrrev_b32 v6, 5, v{vL}
    v_lshl_add_u32 v6, v6, 8, v3
    s_lshl_b32 s{sTmp}, s{sWave}, 9
    v_add_u32 v6, s{sTmp}, v6
    s_mov_b32 exec_lo, 0x00ff00ff
    s_mov_b32 exec_hi, 0xff00ff00
    ds_write_b128 v6, {v4(vD)} offset:{L_Y}
    s_mov_b64 exec, -1
    s_waitcnt lgkmcnt(0)
    s_barrier
    s_cmp_eq_u32 s{sWave}, 0
    s_cbranch_scc0 L_end
    v_lshlrev_b32 v6, 4, v{vL}
    ds_read_b128 {v4(vO)}, v6 offset:{L_Y}
    ds_read_b128 {v4(vS)}, v6 offset:{L_Y+1024}
    v_and_b32 v7, 15, v{vL}
    v_lshlrev_b32 v7, 4, v7
    s_add_u32 s{sTmp}, s{sRec}, {R_Y2}
    s_waitcnt lgkmcnt(0)
    ''')
    for k in range(4): A(f'v_add_f32 v{vO+k}, v{vO+k}, v{vS+k}')
    allredrows('v_add_f32', range(vO, vO + 4), range(vS, vS + 4))
    for k in range(4): A(f'v_min_u32 v{vO+k}, -2, v{vO+k}')
    A(f'''
    s_mov_b64 exec, 0xffff
    buffer_store_dwordx4 {v4(vO)}, v7, {srd(rWS)}, s{sTmp} offen sc1
    s_mov_b64 exec, -1
    s_cmp_eq_u32 s{sHK}, s{sS}
    s_cbranch_scc0 L_fin0
    ''')
    A(f'''
    v_lshrrev_b32 v6, 4, v{vL}
    v_lshl_add_u32 v6, v6, 17, v7
    s_lshl_b32 s66, s{sS}, 13
    s_add_u32 s66, s66, {R_Y2}
    s_mov_b32 s{sCnt}, {SPIN}
    s_mov_b32 s{rW}, s{sOUT}
    s_mov_b32 s{rW+1}, s{sOUT+1}
    s_mov_b32 s{rW+2}, 1152
    s_mov_b32 s{rW+3}, 0x20000
    L_polly:
    s_mov_b32 s{sTmp}, s66
    ''')
    for j in range(4):
        A(f'buffer_load_dwordx4 {v4(vWD+4*j)}, v6, {srd(rWS)}, s{sTmp} offen sc1')
        A(f'buffer_load_dwordx4 {v4(vWD+16+4*j)}, v6, {srd(rWS)}, s{sTmp} offen offset:256 sc1')
        if j < 3: A(f's_add_u32 s{sTmp}, s{sTmp}, {64*REC}')
    A('s_waitcnt vmcnt(0)')
    check_sent(range(vWD, vWD + 32), vT + 1, 'L_polly')
    for j in range(1, 4):
        for k in range(4): A(f'v_add_f32 v{vWD+k}, v{vWD+k}, v{vWD+4*j+k}')
        for k in range(4): A(f'v_add_f32 v{vWD+16+k}, v{vWD+16+k}, v{vWD+16+4*j+k}')
    rs = list(range(vWD, vWD + 4)) + list(range(vWD + 16, vWD + 20))
    allredrows('v_add_f32', rs, list(range(vWD + 4, vWD + 12)))
    for r in rs: bf16r(r, r)
    A(f'''
    v_lshlrev_b32 v{vS}, 16, v{vQ}
    v_and_b32 v{vS+1}, 0xffff0000, v{vQ}
    v_lshlrev_b32 v{vS+2}, 16, v{vQ+1}
    v_and_b32 v{vS+3}, 0xffff0000, v{vQ+1}
    ''')
    for k in range(4): A(f'v_add_f32 v{vS+k}, v{vS+k}, v{vWD+k}')
    for k in range(4): bf16r(vS + k, vS + k)
    for k in range(4): A(f'v_add_f32 v{vS+k}, v{vS+k}, v{vWD+16+k}')
    A(f'''
    v_cvt_pk_bf16_f32 v{vS}, v{vS}, v{vS+1}
    v_cvt_pk_bf16_f32 v{vS+1}, v{vS+2}, v{vS+3}
    v_lshrrev_b32 v7, 1, v7
    s_lshl_b32 s{sTmp}, s{sS}, 7
    s_mov_b64 exec, 0xffff
    buffer_store_dwordx2 {v2(vS)}, v7, {srd(rW)}, s{sTmp} offen
    L_fin0:
    ''')
    dump_ts(0)
    A('L_end:\ns_endpgm')
    body, pads = fix('\n'.join(o))
    src = HEADER + f'''; Generated by work/gen_main.py (own generator); D={D}
; @launch grid=(256,1,1) block=(512,1,1) lds={LDS_BYTES}
.amdgcn_target "amdgcn-amd-amdhsa--gfx950"
.text
.globl {NAME}
.p2align 8
.type {NAME},@function
{body}
.section .rodata,"a"
.p2align 6
.amdhsa_kernel {NAME}
  .amdhsa_next_free_vgpr {NV}
  .amdhsa_next_free_sgpr 96
  .amdhsa_accum_offset {(NV+3)//4*4}
  .amdhsa_group_segment_fixed_size 0
  .amdhsa_kernarg_size 96
  .amdhsa_user_sgpr_count 2
  .amdhsa_user_sgpr_kernarg_segment_ptr 1
  .amdhsa_system_sgpr_workgroup_id_x 1
  .amdhsa_float_denorm_mode_32 3
.end_amdhsa_kernel
'''
    return src, NV, pads

if __name__ == '__main__':
    import argparse
    ap = argparse.ArgumentParser()
    ap.add_argument('-o', default='parallel_sum__gqa_block_cached__glu_gated_glu__decode.s')
    ap.add_argument('-D', type=int, default=4)
    ap.add_argument('--ts', action='store_true')
    ap.add_argument('--noprio', action='store_true')
    a = ap.parse_args()
    src, nv, pads = gen(D=a.D, ts=a.ts, lowprio=not a.noprio)
    open(a.o, 'w').write(src)
    print('vgprs', nv, 'pad states', pads, 'lines', src.count('\n'))
```

```python
import sys
from hazard import fix

NAME = 'parallel_sum__gqa_block_cached__glu_gated_glu__decode_kernel'
HEADER = open('parallel_sum__gqa_block_cached__glu_gated_glu__decode.s.ref').read().split('; Override launch')[0]

REC = 8192
WS_REC = 65536
R_Q, R_GU, R_O, R_ML, R_YG, R_Y2 = 0, 256, 2560, 3584, 3840, 6144
L_Q, L_O, L_ML, L_Y = 0, 1024, 9216, 9472
LDS_BYTES = 9472 + 2048
LOG2E = 0x3FB8AA3B
SCALE = 0x3DB504F3
INV576 = 0x3AE38E39
EPS = 0x3727C5AC
SPIN = 1 << 18
OOB = 0x7ff00000

def gen(D=4, ts=False, lowprio=True, kvflag='nt', vflag=None, wflag='nt', hold=0, qsleep=0):
    o = []
    def A(s):
        for l in s.strip('\n').split('\n'):
            l = l.strip()
            if not l: continue
            o.append(l if l.endswith(':') else '  ' + l)
    uid = [0]
    def lab(p):
        uid[0] += 1
        return f'L_{p}_{uid[0]}'

    sX, sK, sV, sWQ, sWO, sGATE, sUP, sDOWN, sOUT, sDBG, sWS = 4, 6, 8, 10, 12, 16, 18, 20, 22, 24, 26
    rK, rV, rX, rW, rWS = 28, 32, 36, 40, 44
    sTag = 48
    sWave, sHK, sS = 3, 52, 53
    sT, sRnd, sTmp, sTmp2, sCnt, sRec, sGrp = 54, 55, 56, 57, 58, 59, 60
    sHI, sL2E, sSC = 62, 64, 65
    sA, sB = 66, 67
    sTS = 70
    def srd(r): return f's[{r}:{r+3}]'
    vL, vKo, vVo, vFF = 0, 4, 5, 99
    vM = 8; vQ = 12; vO = 28; vS = 32; vB = 36; vB2 = 40
    vm, vmL, vl = 44, 45, 46
    vT = 47
    vD = 60; vD1 = 56
    vW = 64
    vSl = 100
    NV = max(vSl + 32 * D, 220)
    def v4(r): return f'v[{r}:{r+3}]'
    def v2(r): return f'v[{r}:{r+1}]'

    def stamp(i):
        if ts: A(f's_memrealtime s[{sTS+2*i}:{sTS+2*i+1}]')
    def dump_ts(slot):
        if not ts: return
        A('s_mov_b64 exec, -1')
        stamp(7)
        A(f's_waitcnt lgkmcnt(0)')
        A(f's_add_u32 s28, s{sWS}, 0x20000000\ns_addc_u32 s29, s{sWS+1}, 0\ns_mov_b32 s30, 0x100000\ns_mov_b32 s31, 0x20000')
        A(f's_lshl_b32 s{sTmp}, s2, 8\ns_add_u32 s{sTmp}, s{sTmp}, {slot*64}\nv_mov_b32 v1, 0')
        for i in range(8):
            A(f'v_mov_b32 v2, s{sTS+2*i}\nbuffer_store_dword v2, v1, s[28:31], s{sTmp} offen offset:{4*i}')

    def allred16(op, r):
        for m in ('quad_perm:[1,0,3,2]', 'quad_perm:[2,3,0,1]', 'row_half_mirror', 'row_mirror'):
            A(f'{op}_dpp v{r}, v{r}, v{r} {m} row_mask:0xf bank_mask:0xf')
    def allred8(op, rs):
        for m in ('quad_perm:[1,0,3,2]', 'quad_perm:[2,3,0,1]', 'row_half_mirror'):
            for r in rs:
                A(f'{op}_dpp v{r}, v{r}, v{r} {m} row_mask:0xf bank_mask:0xf')
    def allredrows(op, rs, ts_):
        for sw in ('v_permlane16_swap_b32', 'v_permlane32_swap_b32'):
            for r, t in zip(rs, ts_): A(f'v_mov_b32 v{t}, v{r}')
            for r, t in zip(rs, ts_): A(f'{sw} v{r}, v{t}')
            for r, t in zip(rs, ts_): A(f'{op} v{r}, v{r}, v{t}')
    def bf16r(dst, src):
        A(f'v_cvt_pk_bf16_f32 v{dst}, v{src}, v{src}\nv_lshlrev_b32 v{dst}, 16, v{dst}')
    def diag(dst, src):
        for w in range(4): A(f'v_and_b32 v{dst+w}, v{src}, v{vM+w}')
    def tag4(r):
        for k in range(4): A(f'v_bfi_b32 v{r+k}, v{vFF}, s{sTag+k}, v{r+k}')
    def check_tag(grans, t, retry):
        first = True
        for g in grans:
            for k in range(4):
                if first: A(f'v_xor_b32 v{t}, s{sTag+k}, v{g+k}'); first = False
                else: A(f'v_bitop3_b32 v{t}, v{t}, v{g+k}, s{sTag+k} bitop3:0xf6')
        done = lab('got')
        A(f'v_and_b32 v{t}, 0xff, v{t}\nv_cmp_ne_u32 vcc, 0, v{t}\ns_cbranch_vccz {done}')
        A(f's_sub_u32 s{sCnt}, s{sCnt}, 1\ns_cbranch_scc0 {retry}\n{done}:')
    def diagadd(dst):
        for k in range(4): A(f'v_mov_b32 v{vD1+k}, v{vD+k}')
        for k in range(4): A(f'v_permlane32_swap_b32 v{vD+k}, v{vD1+k}')
        for k in range(4): A(f'v_add_f32_dpp v{dst+k}, v{vD1+k}, v{vD+k} row_ror:8 row_mask:0xf bank_mask:0xf')
    def mksrd(r, ptr, size):
        A(f's_mov_b32 s{r}, s{ptr}\ns_mov_b32 s{r+1}, s{ptr+1}\ns_mov_b32 s{r+2}, {size}\ns_mov_b32 s{r+3}, 0x20000')

    def kv_loads(d):
        r = vSl + 32 * d
        for j in range(4): A(f'buffer_load_dwordx4 {v4(r+4*j)}, v{vKo}, {srd(rK)}, s{sT} offen offset:{64*j} {kvflag}')
        for j in range(4): A(f'buffer_load_dwordx4 {v4(r+16+4*j)}, v{vVo}, {srd(rV)}, s{sT} offen offset:{256*j} {kvflag if vflag is None else vflag}')
        A(f's_add_u32 s{sT}, s{sT}, 32768')
    def masks():
        A(f'''
        v_and_b32 v{vT}, 1, v{vL}
        v_lshlrev_b32 v{vT}, 4, v{vT}
        v_mov_b32 v{vT+1}, 0xffff
        v_lshlrev_b32 v{vT}, v{vT}, v{vT+1}
        v_bfe_u32 v{vT+1}, v{vL}, 1, 2
        ''')
        for w in range(4):
            A(f'v_cmp_eq_u32 vcc, {w}, v{vT+1}\nv_cndmask_b32 v{vM+w}, 0, v{vT}, vcc')
    def common_setup():
        A(f'''
        s_lshl_b32 s{sRec}, s2, 13
        s_lshl_b32 s{sGrp}, s{sHK}, 17
        s_mov_b32 s{sHI}, 0
        s_mov_b32 s{sHI+1}, -1
        s_mov_b32 s{sL2E}, {LOG2E:#x}
        s_mov_b32 s{sSC}, {SCALE:#x}
        s_add_u32 s{rWS}, s{sWS}, {WS_REC}
        s_addc_u32 s{rWS+1}, s{sWS+1}, 0
        s_mov_b32 s{rWS+2}, {256*REC}
        s_mov_b32 s{rWS+3}, 0x20000
        ''')
    def kv_setup():
        A(f'''
        v_and_b32 v{vT}, 15, v{vL}
        v_lshrrev_b32 v{vT+1}, 4, v{vL}
        s_lshl_b32 s{sT}, s{sWave}, 12
        v_lshlrev_b32 v{vKo}, 8, v{vT}
        v_lshl_add_u32 v{vKo}, v{vT+1}, 4, v{vKo}
        v_lshlrev_b32 v{vVo}, 10, v{vT+1}
        v_lshl_add_u32 v{vVo}, v{vT}, 4, v{vVo}
        s_lshl_b32 s{sTmp2}, s2, 20
        s_add_u32 s{rK}, s{sK}, s{sTmp2}
        s_addc_u32 s{rK+1}, s{sK+1}, 0
        s_mov_b32 s{rK+2}, 0x100000
        s_mov_b32 s{rK+3}, 0x20000
        s_add_u32 s{rV}, s{sV}, s{sTmp2}
        s_addc_u32 s{rV+1}, s{sV+1}, 0
        s_mov_b32 s{rV+2}, 0x100000
        s_mov_b32 s{rV+3}, 0x20000
        ''')
    def tag_setup():
        A(f'''
        s_waitcnt lgkmcnt(0)
        s_add_u32 s{sTag}, s{sTag}, 0x04030201
        s_lshr_b32 s{sTag+1}, s{sTag}, 8
        s_lshr_b32 s{sTag+2}, s{sTag}, 16
        s_lshr_b32 s{sTag+3}, s{sTag}, 24
        ''')
    vX4, vX1 = 52, 51
    a, b, c_ = 38, 39, 40
    def ln_stats():
        f = 28
        for k in range(4):
            A(f'v_lshlrev_b32 v{f+2*k}, 16, v{vX4+k}\nv_and_b32 v{f+2*k+1}, 0xffff0000, v{vX4+k}')
        A(f'v_lshlrev_b32 v{f+8}, 16, v{vX1}\nv_and_b32 v{f+9}, 0xffff0000, v{vX1}')
        A(f'v_add_f32 v{a}, v{f}, v{f+1}\nv_add_f32 v{b}, v{f+2}, v{f+3}')
        for k in (4, 6, 8): A(f'v_add_f32 v{a}, v{a}, v{f+k}\nv_add_f32 v{b}, v{b}, v{f+k+1}')
        A(f'v_add_f32 v{a}, v{a}, v{b}')
        allred16('v_add_f32', a); allredrows('v_add_f32', [a], [b])
        A(f'v_mul_f32 v{a}, {INV576:#x}, v{a}')
        for k in range(10): A(f'v_sub_f32 v{f+k}, v{f+k}, v{a}')
        A(f'v_cndmask_b32 v{f+8}, v{f+8}, 0, s[{sHI}:{sHI+1}]\nv_cndmask_b32 v{f+9}, v{f+9}, 0, s[{sHI}:{sHI+1}]')
        A(f'v_mul_f32 v{b}, v{f}, v{f}\nv_mul_f32 v{c_}, v{f+1}, v{f+1}')
        for k in (2, 4, 6, 8): A(f'v_fmac_f32 v{b}, v{f+k}, v{f+k}\nv_fmac_f32 v{c_}, v{f+k+1}, v{f+k+1}')
        A(f'v_add_f32 v{b}, v{b}, v{c_}')
        allred16('v_add_f32', b); allredrows('v_add_f32', [b], [c_])
        A(f'v_mul_f32 v{b}, {INV576:#x}, v{b}')
        bf16r(a, a); bf16r(b, b)
        A(f'v_add_f32 v{b}, {EPS:#x}, v{b}'); bf16r(b, b)
        A(f'v_sqrt_f32 v{b}, v{b}'); bf16r(b, b)
        A(f'v_rcp_f32 v{b}, v{b}')
    def normalize(rs):
        for r in rs: A(f'v_sub_f32 v{r}, v{r}, v{a}')
        for r in rs: A(f'v_cvt_pk_bf16_f32 v{r}, v{r}, v{r}')
        for r in rs: A(f'v_lshlrev_b32 v{r}, 16, v{r}')
        for r in rs: A(f'v_mul_f32 v{r}, v{r}, v{b}')
        for r in rs: A(f'v_cvt_pk_bf16_f32 v{r}, v{r}, v{r}')
    def xstat_loads():
        A(f'''
        buffer_load_dwordx4 {v4(vX4)}, v7, {srd(rX)}, 0 offen
        buffer_load_dword v{vX1}, v6, {srd(rX)}, 0 offen offset:1024
        ''')

    A(f'{NAME}:')
    A(f'''
    s_cmp_ge_u32 s2, 256
    s_cbranch_scc1 L_end
    s_load_dwordx16 s[4:19], s[0:1], 0
    s_load_dwordx8 s[20:27], s[0:1], 64
    ''')
    if ts:
        for i in range(16): A(f's_mov_b32 s{sTS+i}, 0')
    stamp(0)
    A(f'''
    v_lshrrev_b32 v1, 6, v0
    v_and_b32 v{vL}, 63, v0
    v_readfirstlane_b32 s{sWave}, v1
    s_lshr_b32 s{sHK}, s2, 4
    s_and_b32 s{sS}, s2, 15
    v_lshlrev_b32 v7, 4, v{vL}
    v_lshlrev_b32 v6, 2, v{vL}
    s_mov_b32 s{rX+2}, 1152
    s_mov_b32 s{rX+3}, 0x20000
    s_mov_b32 s{rW+3}, 0x20000
    s_cmp_eq_u32 s{sWave}, 0
    s_cbranch_scc0 L_notw0
    ''')
    vXP = 64
    vXD0 = 74
    A(f'''
    s_setprio 3
    v_lshrrev_b32 v1, 3, v{vL}
    v_and_b32 v2, 7, v{vL}
    s_lshr_b32 s{sTmp}, s{sS}, 2
    s_mul_i32 s{sTmp}, s{sTmp}, 144
    v_mad_u32_u24 v1, v1, 18, s{sTmp}
    v_lshlrev_b32 v3, 13, v1
    v_lshl_add_u32 v3, v2, 4, v3
    v_lshlrev_b32 v1, 1, v1
    s_and_b32 s{sTmp}, s{sS}, 3
    s_lshl_b32 s{sTmp}, s{sTmp}, 7
    s_lshl_b32 s{sTmp2}, s{sHK}, 9
    s_add_u32 s{sTmp}, s{sTmp}, s{sTmp2}
    s_mov_b32 s{rW+2}, {576*8192}
    s_waitcnt lgkmcnt(0)
    s_mov_b32 s{rX}, s{sX}
    s_mov_b32 s{rX+1}, s{sX+1}
    s_mov_b32 s{rW}, s{sWQ}
    s_mov_b32 s{rW+1}, s{sWQ+1}
    s_load_dword s{sTag}, s[{sWS}:{sWS+1}], 0
    ''')
    xstat_loads()
    A(f'''
    buffer_load_dwordx4 {v4(vXP)}, v1, {srd(rX)}, 0 offen
    buffer_load_dwordx4 {v4(vXP+4)}, v1, {srd(rX)}, 0 offen offset:16
    buffer_load_dword v{vXP+8}, v1, {srd(rX)}, 0 offen offset:32
    ''')
    for j in range(18):
        A(f'buffer_load_dwordx4 {v4(vSl+4*j)}, v3, {srd(rW)}, s{sTmp} offen {wflag}')
        if j < 17: A(f's_add_u32 s{sTmp}, s{sTmp}, 8192')
    if hold: A('s_barrier')
    common_setup(); kv_setup(); masks()
    A(f'''
    v_mov_b32 v{vFF}, 0xff
    v_bfe_u32 v3, v{vL}, 4, 1
    v_lshlrev_b32 v3, 4, v3
    v_lshl_add_u32 v3, v2, 5, v3
    v_lshrrev_b32 v2, 4, v{vL}
    v_and_b32 v1, 15, v{vL}
    v_lshlrev_b32 v1, 4, v1
    v_lshl_add_u32 v1, v2, 13, v1
    v_lshlrev_b32 v2, 3, v{vL}
    ''')
    tag_setup()
    A('s_waitcnt vmcnt(18)')
    stamp(1)
    ln_stats()
    for i in range(9):
        A(f'v_lshlrev_b32 v{vXD0+2*i}, 16, v{vXP+i}\nv_and_b32 v{vXD0+2*i+1}, 0xffff0000, v{vXP+i}')
    normalize(range(vXD0, vXD0 + 18))
    for j in range(18):
        bb = vB if j % 2 == 0 else vB2
        diag(bb, vXD0 + j)
        if j % 6 == 0: A(f's_waitcnt vmcnt({12-j})')
        A(f'v_mfma_f32_16x16x32_bf16 {v4(vD)}, {v4(bb)}, {v4(vSl+4*j)}, {"0" if j == 0 else v4(vD)}')
    stamp(2)
    diagadd(vO); tag4(vO)
    A(f'''
    s_mov_b64 exec, 0x00ff00ff
    buffer_store_dwordx4 {v4(vO)}, v3, {srd(rWS)}, s{sRec} offen sc1
    s_mov_b64 exec, -1
    s_add_u32 s{sA}, s{sGrp}, {4*REC}
    s_add_u32 s{sB}, s{sGrp}, {8*REC}
    s_add_u32 s{sTmp}, s{sGrp}, {12*REC}
    s_mov_b32 s{sCnt}, {SPIN}
    ''')
    stamp(3)
    A('L_pollq:')
    if qsleep: A(f's_sleep {qsleep}')
    for p, so in enumerate((sGrp, sA, sB, sTmp)):
        A(f'buffer_load_dwordx4 {v4(vW+4*p)}, v1, {srd(rWS)}, s{so} offen sc1')
    A('s_waitcnt vmcnt(0)')
    check_tag([vW + 4 * p for p in range(4)], vT, 'L_pollq')
    stamp(4)
    for k in range(4): A(f'v_add_f32 v{vW+k}, v{vW+k}, v{vW+4+k}')
    for k in range(4): A(f'v_add_f32 v{vW+8+k}, v{vW+8+k}, v{vW+12+k}')
    for k in range(4): A(f'v_add_f32 v{vW+k}, v{vW+k}, v{vW+8+k}')
    A(f'''
    v_cvt_pk_bf16_f32 v{vS}, v{vW}, v{vW+1}
    v_cvt_pk_bf16_f32 v{vS+1}, v{vW+2}, v{vW+3}
    ds_write_b64 v2, {v2(vS)} offset:{L_Q}
    s_waitcnt lgkmcnt(0)
    s_barrier
    s_setprio 1
    ''')
    for d in range(D): kv_loads(d)
    A('s_branch L_main')
    vXD = vQ
    A(f'''
    L_notw0:
    s_setprio 1
    s_cmp_eq_u32 s{sWave}, 7
    s_cbranch_scc1 L_w7
    v_and_b32 v1, 15, v{vL}
    v_lshrrev_b32 v2, 4, v{vL}
    s_mul_i32 s{sTmp}, s{sS}, 36
    v_add_u32 v2, s{sTmp}, v2
    s_sub_u32 s{sTmp}, s{sWave}, 1
    s_and_b32 s{sTmp2}, s{sTmp}, 1
    s_lshr_b32 s{sTmp}, s{sTmp}, 1
    s_mul_i32 s{sA}, s{sTmp2}, 1152
    s_lshl_b32 s{sCnt}, s{sTmp}, 9
    s_add_u32 s{sA}, s{sA}, s{sCnt}
    s_cmp_eq_u32 s{sTmp}, 2
    s_cselect_b32 s{sB}, 4, 16
    s_lshl_b32 s{sTmp}, s{sTmp}, 8
    s_mul_i32 s{sCnt}, s{sHK}, 576
    s_add_u32 s{sTmp}, s{sTmp}, s{sCnt}
    v_mul_u32_u24 v3, 9216, v2
    v_lshl_add_u32 v3, v1, 4, v3
    v_cmp_gt_u32 vcc, s{sB}, v1
    v_mov_b32 v{vT}, {OOB:#x}
    v_cndmask_b32 v3, v{vT}, v3, vcc
    v_lshlrev_b32 v2, 1, v2
    s_mov_b32 s{rW+2}, {576*9216}
    s_waitcnt lgkmcnt(0)
    s_mov_b32 s{rX}, s{sX}
    s_mov_b32 s{rX+1}, s{sX+1}
    s_cmp_eq_u32 s{sTmp2}, 0
    s_cselect_b32 s{rW}, s{sGATE}, s{sUP}
    s_cselect_b32 s{rW+1}, s{sGATE+1}, s{sUP+1}
    s_load_dword s{sTag}, s[{sWS}:{sWS+1}], 0
    ''')
    if hold: A('s_barrier')
    xstat_loads()
    for j in range(9): A(f'buffer_load_ushort v{vXD+j}, v2, {srd(rX)}, 0 offen offset:{8*j}')
    for j in range(9):
        A(f'buffer_load_dwordx4 {v4(vW+4*j)}, v3, {srd(rW)}, s{sTmp} offen {wflag}')
        if j < 8: A(f's_add_u32 s{sTmp}, s{sTmp}, {4*9216}')
    kv_setup()
    for d in range(D): kv_loads(d)
    common_setup(); masks()
    A(f'''
    s_add_u32 s{sA}, s{sA}, s{sRec}
    v_cmp_gt_u32 vcc, s{sB}, v1
    v_lshlrev_b32 v1, 5, v1
    v_bfe_u32 v2, v{vL}, 4, 1
    v_lshl_add_u32 v1, v2, 4, v1
    v_mov_b32 v2, {OOB:#x}
    v_cndmask_b32 v1, v2, v1, vcc
    v_cndmask_b32 v1, v1, v2, s[{sHI}:{sHI+1}]
    ''')
    tag_setup()
    A(f's_waitcnt vmcnt({9+8*D})')
    stamp(1)
    ln_stats()
    for j in range(9): A(f'v_lshlrev_b32 v{vXD+j}, 16, v{vXD+j}')
    normalize(range(vXD, vXD + 9))
    A(f's_waitcnt vmcnt({8*D})')
    stamp(2)
    for j in range(9):
        bb = vB if j % 2 == 0 else vB2
        diag(bb, vXD + j)
        A(f'v_mfma_f32_16x16x32_bf16 {v4(vD)}, {v4(bb)}, {v4(vW+4*j)}, {"0" if j == 0 else v4(vD)}')
    A(f'v_mov_b32 v{vFF}, 0xff')
    tag4(vD)
    A(f'''
    buffer_store_dwordx4 {v4(vD)}, v1, {srd(rWS)}, s{sA} offen offset:{R_GU} sc1
    s_barrier
    s_branch L_main
    L_w7:
    s_waitcnt lgkmcnt(0)
    s_mov_b32 s{rX}, s{sX}
    s_mov_b32 s{rX+1}, s{sX+1}
    s_load_dword s{sTag}, s[{sWS}:{sWS+1}], 0
    ''')
    kv_setup()
    if hold: A('s_barrier')
    for d in range(D): kv_loads(d)
    common_setup(); masks()
    A(f'v_mov_b32 v{vFF}, 0xff')
    tag_setup()
    A('s_barrier')
    A(f'''
    L_main:
    v_bfe_u32 v1, v{vL}, 3, 1
    v_lshrrev_b32 v2, 4, v{vL}
    v_lshlrev_b32 v1, 8, v1
    v_lshl_add_u32 v1, v2, 4, v1
    ''')
    for j in range(4): A(f'ds_read_b128 {v4(vQ+4*j)}, v1 offset:{L_Q+64*j}')
    if ts: A(f's_cmp_eq_u32 s{sWave}, 0\ns_cbranch_scc1 L_nost3'); stamp(3); A('L_nost3:')
    for k in range(4): A(f'v_mov_b32 v{vO+k}, 0')
    A(f'''
    v_mov_b32 v{vm}, 0xf149f2ca
    v_mov_b32 v{vl}, 0
    v_mul_f32 v{vmL}, s{sL2E}, v{vm}
    s_mov_b32 s{sRnd}, {32//D - 1}
    s_waitcnt lgkmcnt(0)
    L_loop:
    ''')
    ool = []
    t0, t1, tm = vT, vT + 1, vT + 2
    for d in range(D):
        r = vSl + 32 * d
        def wait(a_, b_, tag):
            if a_ == b_:
                A(f's_waitcnt vmcnt({a_})')
            else:
                A(f's_cmp_eq_u32 s{sRnd}, 0\ns_cbranch_scc1 L_{tag}l{d}\ns_waitcnt vmcnt({a_})\nL_{tag}b{d}:')
                ool.append(f'L_{tag}l{d}:\ns_waitcnt vmcnt({b_})\ns_branch L_{tag}b{d}')
        wait(8*(D-1)+4, 8*(D-1-d)+4, 'wk')
        for j in range(4):
            A(f'v_mfma_f32_16x16x32_bf16 {v4(vS)}, {v4(r+4*j)}, {v4(vQ+4*j)}, {"0" if j == 0 else v4(vS)}')
        def rnd():
            A(f'''
            v_cvt_pk_bf16_f32 v{t0}, v{vS}, v{vS+1}
            v_cvt_pk_bf16_f32 v{t1}, v{vS+2}, v{vS+3}
            v_lshlrev_b32 v{vS}, 16, v{t0}
            v_and_b32 v{vS+1}, 0xffff0000, v{t0}
            v_lshlrev_b32 v{vS+2}, 16, v{t1}
            v_and_b32 v{vS+3}, 0xffff0000, v{t1}
            ''')
        rnd()
        for k in range(4): A(f'v_mul_f32 v{vS+k}, s{sSC}, v{vS+k}')
        rnd()
        A(f'''
        v_max3_f32 v{tm}, v{vS}, v{vS+1}, v{vS+2}
        v_max_f32 v{tm}, v{tm}, v{vS+3}
        v_cmp_gt_f32 vcc, v{tm}, v{vm}
        s_cbranch_vccnz L_upd{d}
        L_updb{d}:
        ''')
        ool.append(f'''
        L_upd{d}:
        v_mov_b32 v{t0}, v{tm}
        v_permlane16_swap_b32 v{tm}, v{t0}
        v_max_f32 v{tm}, v{tm}, v{t0}
        v_mov_b32 v{t0}, v{tm}
        v_permlane32_swap_b32 v{tm}, v{t0}
        v_max3_f32 v{vm}, v{vm}, v{tm}, v{t0}
        v_mul_f32 v{t0}, s{sL2E}, v{vm}
        v_sub_f32 v{t1}, v{vmL}, v{t0}
        v_exp_f32 v{t1}, v{t1}
        v_mov_b32 v{vmL}, v{t0}
        v_mul_f32 v{vl}, v{vl}, v{t1}
        v_mul_f32 v{vO}, v{vO}, v{t1}
        v_mul_f32 v{vO+1}, v{vO+1}, v{t1}
        v_mul_f32 v{vO+2}, v{vO+2}, v{t1}
        v_mul_f32 v{vO+3}, v{vO+3}, v{t1}
        s_branch L_updb{d}
        ''')
        for k in range(4): A(f'v_fma_f32 v{vS+k}, v{vS+k}, s{sL2E}, -v{vmL}')
        for k in range(4): A(f'v_exp_f32 v{vS+k}, v{vS+k}')
        A(f'v_add_f32 v{t0}, v{vS}, v{vS+1}\nv_add_f32 v{t1}, v{vS+2}, v{vS+3}')
        for k in range(4): A(f'v_cvt_pk_bf16_f32 v{vS+k}, v{vS+k}, v{vS+k}')
        A(f'v_add_f32 v{vl}, v{vl}, v{t0}\nv_add_f32 v{vl}, v{vl}, v{t1}')
        diag(vB, vS); diag(vB2, vS + 1)
        wait(8*(D-1), 8*(D-1-d), 'wv')
        A(f'v_mfma_f32_16x16x32_bf16 {v4(vO)}, {v4(r+16)}, {v4(vB)}, {v4(vO)}')
        diag(vB, vS + 2)
        A(f'v_mfma_f32_16x16x32_bf16 {v4(vO)}, {v4(r+20)}, {v4(vB2)}, {v4(vO)}')
        diag(vB2, vS + 3)
        A(f'v_mfma_f32_16x16x32_bf16 {v4(vO)}, {v4(r+24)}, {v4(vB)}, {v4(vO)}')
        A(f's_cmp_eq_u32 s{sRnd}, 0')
        A(f'v_mfma_f32_16x16x32_bf16 {v4(vO)}, {v4(r+28)}, {v4(vB2)}, {v4(vO)}')
        A(f's_cbranch_scc1 L_norf{d}')
        kv_loads(d)
        A(f'L_norf{d}:')
    A(f'''
    s_sub_u32 s{sRnd}, s{sRnd}, 1
    s_cbranch_scc0 L_loop
    s_branch L_post
    ''')
    for b_ in ool: A(b_)
    A('L_post:')
    stamp(5)
    allredrows('v_add_f32', [vl], [t0])
    A(f'''
    v_lshlrev_b32 v1, 4, v{vL}
    s_lshl_b32 s{sTmp}, s{sWave}, 10
    v_add_u32 v2, s{sTmp}, v1
    ds_write_b128 v2, {v4(vO)} offset:{L_O}
    v_bfe_u32 v3, v{vL}, 3, 1
    v_lshlrev_b32 v3, 3, v3
    s_lshl_b32 s{sTmp}, s{sWave}, 4
    v_add_u32 v2, s{sTmp}, v3
    v_mov_b32 v{vS}, v{vmL}
    v_mov_b32 v{vS+1}, v{vl}
    ds_write_b64 v2, {v2(vS)} offset:{L_ML}
    s_cmp_ge_u32 s{sWave}, 4
    s_cbranch_scc0 L_g1
    s_waitcnt lgkmcnt(0)
    s_barrier
    s_cmp_eq_u32 s{sWave}, 4
    s_cbranch_scc0 L_end
    ''')
    stamp(6)
    if ts: A('s_waitcnt lgkmcnt(0)')
    for i in range(8): A(f'ds_read_b64 {v2(vW+2*i)}, v3 offset:{L_ML+16*i}')
    for i in range(8): A(f'ds_read_b128 {v4(vSl+4*i)}, v1 offset:{L_O+1024*i}')
    A(f'''
    v_lshrrev_b32 v2, 4, v{vL}
    v_and_b32 v6, 7, v{vL}
    v_lshlrev_b32 v2, 7, v2
    v_lshl_add_u32 v2, v6, 4, v2
    v_lshl_add_u32 v2, v3, 6, v2
    v_lshlrev_b32 v3, 1, v3
    v_mov_b32 v{vS+2}, s{sTag+2}
    v_mov_b32 v{vS+3}, s{sTag+3}
    s_waitcnt lgkmcnt(8)
    v_max3_f32 v{vS}, v{vW}, v{vW+2}, v{vW+4}
    v_max3_f32 v{vS}, v{vS}, v{vW+6}, v{vW+8}
    v_max3_f32 v{vS}, v{vS}, v{vW+10}, v{vW+12}
    v_max_f32 v{vS}, v{vS}, v{vW+14}
    v_bfi_b32 v{vS}, v{vFF}, s{sTag}, v{vS}
    ''')
    for i in range(8): A(f'v_sub_f32 v{vW+2*i}, v{vW+2*i}, v{vS}')
    for i in range(8): A(f'v_exp_f32 v{vW+2*i}, v{vW+2*i}')
    A(f'v_mul_f32 v{vS+1}, v{vW}, v{vW+1}')
    for i in range(1, 8): A(f'v_fmac_f32 v{vS+1}, v{vW+2*i}, v{vW+2*i+1}')
    A(f'v_bfi_b32 v{vS+1}, v{vFF}, s{sTag+1}, v{vS+1}')
    A('s_waitcnt lgkmcnt(0)')
    for k in range(4): A(f'v_mul_f32 v{vO+k}, v{vW}, v{vSl+k}')
    for i in range(1, 8):
        for k in range(4): A(f'v_fmac_f32 v{vO+k}, v{vW+2*i}, v{vSl+4*i+k}')
    tag4(vO)
    A(f'''
    buffer_store_dwordx4 {v4(vO)}, v2, {srd(rWS)}, s{sRec} offen offset:{R_O} sc1
    s_mov_b64 exec, 0x101
    buffer_store_dwordx4 {v4(vS)}, v3, {srd(rWS)}, s{sRec} offen offset:{R_ML} sc1
    ''')
    dump_ts(1)
    A('s_endpgm')
    vWD, vG, vWO, vP = 100, 148, 164, 196
    A('L_g1:')
    mksrd(rW, sDOWN, 4608*1152)
    A(f'''
    v_lshrrev_b32 v1, 3, v{vL}
    v_and_b32 v2, 7, v{vL}
    s_and_b32 s{sA}, s{sS}, 1
    s_sub_u32 s{sB}, 5, s{sA}
    s_mul_i32 s{sA}, s{sA}, 20
    s_lshr_b32 s{sTmp}, s{sS}, 1
    s_mul_i32 s{sTmp}, s{sTmp}, 36
    s_add_u32 s{sA}, s{sA}, s{sTmp}
    v_mul_u32_u24 v6, 4608, v1
    v_lshl_add_u32 v6, v2, 4, v6
    v_cmp_gt_u32 vcc, s{sB}, v1
    v_mov_b32 v{vT}, {OOB:#x}
    v_cndmask_b32 v6, v{vT}, v6, vcc
    v_cndmask_b32 v7, 0, v1, vcc
    s_mul_i32 s{sTmp}, s{sHK}, 288
    s_add_u32 s{sTmp}, s{sTmp}, s{sA}
    s_mul_i32 s{sTmp}, s{sTmp}, 1152
    s_lshl_b32 s{sTmp2}, s{sWave}, 7
    s_add_u32 s{sTmp}, s{sTmp}, s{sTmp2}
    s_add_u32 s{sTmp2}, s{sTmp}, 1024
    ''')
    for ci in range(3):
        if ci == 2: A(f's_cmp_eq_u32 s{sWave}, 0\ns_cbranch_scc0 L_nowd')
        for j in range(4):
            A(f'buffer_load_dwordx4 {v4(vWD+16*ci+4*j)}, v6, {srd(rW)}, s{sTmp2 if ci == 2 else sTmp} offen offset:{512*(ci%2)+1152*j} {wflag}')
    A(f'''
    L_nowd:
    v_lshlrev_b32 v7, 4, v7
    v_lshl_add_u32 v7, v2, 13, v7
    s_lshl_b32 s{sTmp}, s{sA}, 2
    s_add_u32 s{sTmp}, s{sTmp}, s{sGrp}
    s_add_u32 s{sTmp2}, s{sTmp}, {8*REC}
    s_mov_b32 s{sCnt}, {SPIN}
    L_pollgu:
    ''')
    for hf, so in enumerate((sTmp, sTmp2)):
        for mat in range(2):
            A(f'buffer_load_dwordx4 {v4(vG+8*hf+4*mat)}, v7, {srd(rWS)}, s{so} offen offset:{R_GU+1152*mat} sc1')
    A('s_waitcnt vmcnt(0)')
    check_tag([vG + 4 * k for k in range(4)], vT + 1, 'L_pollgu')
    for k in range(8): A(f'v_add_f32 v{vG+k}, v{vG+k}, v{vG+8+k}')
    allred8('v_add_f32', range(vG, vG + 8))
    for k in range(8): bf16r(vG + k, vG + k)
    for k in range(4): A(f'v_mul_f32 v{vG+k}, s{sL2E}, v{vG+k}')
    for k in range(4): A(f'v_exp_f32 v{vG+k}, -v{vG+k}')
    for k in range(4): A(f'v_add_f32 v{vG+k}, 1.0, v{vG+k}')
    for k in range(4): A(f'v_rcp_f32 v{vG+k}, v{vG+k}')
    for k in range(4): bf16r(vG + k, vG + k)
    for k in range(4): A(f'v_mul_f32 v{vG+k}, v{vG+k}, v{vG+4+k}')
    for k in range(4): A(f'v_cvt_pk_bf16_f32 v{vG+k}, v{vG+k}, v{vG+k}')
    hb = [vB, vB2, vS, vG + 8]
    for k in range(4): diag(hb[k], vG + k)
    A(f'''
    v_bfe_u32 v3, v{vL}, 4, 1
    v_lshlrev_b32 v3, 4, v3
    v_lshl_add_u32 v3, v2, 5, v3
    s_lshl_b32 s{sTmp}, s{sWave}, 8
    s_add_u32 s{sTmp}, s{sTmp}, s{sRec}
    s_add_u32 s{sTmp}, s{sTmp}, {R_YG}
    ''')
    for ci in range(3):
        if ci == 2: A(f's_cmp_eq_u32 s{sWave}, 0\ns_cbranch_scc0 L_g1done')
        for j in range(4):
            A(f'v_mfma_f32_16x16x32_bf16 {v4(vD)}, {v4(hb[j])}, {v4(vWD+16*ci+4*j)}, {"0" if j == 0 else v4(vD)}')
        diagadd(vO); tag4(vO)
        A(f's_mov_b64 exec, 0x00ff00ff\nbuffer_store_dwordx4 {v4(vO)}, v3, {srd(rWS)}, s{sTmp} offen offset:{1024*ci} sc1\ns_mov_b64 exec, -1')
    A(f'''
    L_g1done:
    s_waitcnt lgkmcnt(0)
    s_cmp_ge_u32 s{sS}, 9
    s_cbranch_scc1 L_fin0
    s_cmp_eq_u32 s{sWave}, 1
    s_cbranch_scc0 L_nog2
    ''')
    A(f'''
    v_lshrrev_b32 v6, 4, v{vL}
    v_and_b32 v7, 15, v{vL}
    v_lshlrev_b32 v7, 4, v7
    v_lshl_add_u32 v6, v6, 13, v7
    s_lshl_b32 s{sTmp}, s{sS}, 8
    s_add_u32 s{sTmp}, s{sTmp}, s{sGrp}
    s_add_u32 s{sA}, s{sTmp}, {R_YG}
    s_mov_b32 s{sCnt}, {SPIN}
    L_pollg2:
    s_sleep 8
    s_mov_b32 s{sTmp}, s{sA}
    ''')
    for j in range(4):
        A(f'buffer_load_dwordx4 {v4(vWD+4*j)}, v6, {srd(rWS)}, s{sTmp} offen sc1')
        if j < 3: A(f's_add_u32 s{sTmp}, s{sTmp}, {4*REC}')
    A('s_waitcnt vmcnt(0)')
    check_tag([vWD + 4 * j for j in range(4)], vT + 1, 'L_pollg2')
    for j in range(1, 4):
        for k in range(4): A(f'v_add_f32 v{vWD+k}, v{vWD+k}, v{vWD+4*j+k}')
    allredrows('v_add_f32', range(vWD, vWD + 4), range(vWD + 4, vWD + 8))
    tag4(vWD)
    A(f'''
    s_add_u32 s{sTmp}, s{sRec}, {R_Y2+256}
    s_mov_b64 exec, 0xffff
    buffer_store_dwordx4 {v4(vWD)}, v7, {srd(rWS)}, s{sTmp} offen sc1
    s_mov_b64 exec, -1
    L_nog2:
    v_and_b32 v6, 15, v{vL}
    v_lshlrev_b32 v6, 3, v6
    s_lshl_b32 s{sTmp}, s{sS}, 7
    buffer_load_dwordx2 {v2(vQ)}, v6, {srd(rX)}, s{sTmp} offen
    ''')
    mksrd(rW, sWO, 4096*1152)
    A(f'''
    v_mul_u32_u24 v6, 1152, v1
    v_lshl_add_u32 v6, v2, 4, v6
    s_lshl_b32 s{sTmp}, s{sHK}, 2
    s_add_u32 s{sTmp}, s{sTmp}, s{sWave}
    s_mul_i32 s{sTmp}, s{sTmp}, {64*1152}
    s_lshl_b32 s{sTmp2}, s{sS}, 7
    s_add_u32 s{sTmp}, s{sTmp}, s{sTmp2}
    ''')
    if lowprio: A('s_setprio 0')
    for i in range(8):
        A(f'buffer_load_dwordx4 {v4(vWO+4*i)}, v6, {srd(rW)}, s{sTmp} offen {wflag}')
        if i < 7: A(f's_add_u32 s{sTmp}, s{sTmp}, 9216')
    A(f'''
    v_lshlrev_b32 v6, 13, v2
    v_lshl_add_u32 v7, v1, 4, v6
    s_lshl_b32 s{sTmp}, s{sWave}, 8
    s_add_u32 s{sTmp}, s{sTmp}, s{sGrp}
    s_add_u32 s{sTmp2}, s{sTmp}, {8*REC}
    s_lshr_b32 s{sA}, s{sWave}, 1
    s_lshl_b32 s{sA}, s{sA}, 4
    s_add_u32 s{sA}, s{sA}, s{sGrp}
    s_add_u32 s{sB}, s{sA}, {8*REC}
    s_mov_b32 s{sCnt}, {SPIN}
    s_barrier
    s_setprio 3
    L_pollo:
    buffer_load_dwordx4 {v4(vP+16)}, v6, {srd(rWS)}, s{sA} offen offset:{R_ML} sc1
    buffer_load_dwordx4 {v4(vP+20)}, v6, {srd(rWS)}, s{sB} offen offset:{R_ML} sc1
    buffer_load_dwordx4 {v4(vP)}, v7, {srd(rWS)}, s{sTmp} offen offset:{R_O} sc1
    buffer_load_dwordx4 {v4(vP+4)}, v7, {srd(rWS)}, s{sTmp} offen offset:{R_O+128} sc1
    buffer_load_dwordx4 {v4(vP+8)}, v7, {srd(rWS)}, s{sTmp2} offen offset:{R_O} sc1
    buffer_load_dwordx4 {v4(vP+12)}, v7, {srd(rWS)}, s{sTmp2} offen offset:{R_O+128} sc1
    s_waitcnt vmcnt(0)
    ''')
    check_tag([vP + 4 * k for k in range(6)], vT + 1, 'L_pollo')
    stamp(6)
    mA, lA, mB, lB = vP + 16, vP + 17, vP + 20, vP + 21
    A(f'v_max_f32 v{vT}, v{mA}, v{mB}')
    allred8('v_max_f32', [vT])
    A(f'''
    v_sub_f32 v{mA}, v{mA}, v{vT}
    v_sub_f32 v{mB}, v{mB}, v{vT}
    v_exp_f32 v{mA}, v{mA}
    v_exp_f32 v{mB}, v{mB}
    v_mul_f32 v{lA}, v{mA}, v{lA}
    v_fmac_f32 v{lA}, v{mB}, v{lB}
    ''')
    for k in range(8): A(f'v_mul_f32 v{vP+k}, v{mA}, v{vP+k}')
    for k in range(8): A(f'v_fmac_f32 v{vP+k}, v{mB}, v{vP+8+k}')
    allred8('v_add_f32', [lA] + list(range(vP, vP + 8)))
    A(f'v_rcp_f32 v{lA}, v{lA}')
    for k in range(8): A(f'v_mul_f32 v{vP+k}, v{lA}, v{vP+k}')
    for k in range(8): A(f'v_cvt_pk_bf16_f32 v{vP+k}, v{vP+k}, v{vP+k}')
    for k in range(8):
        bb = vB if k % 2 == 0 else vB2
        diag(bb, vP + k)
        A(f'v_mfma_f32_16x16x32_bf16 {v4(vD)}, {v4(bb)}, {v4(vWO+4*k)}, {"0" if k == 0 else v4(vD)}')
    A(f'''
    v_lshrrev_b32 v6, 5, v{vL}
    v_lshl_add_u32 v6, v6, 8, v3
    s_lshl_b32 s{sTmp}, s{sWave}, 9
    v_add_u32 v6, s{sTmp}, v6
    s_mov_b32 exec_lo, 0x00ff00ff
    s_mov_b32 exec_hi, 0xff00ff00
    ds_write_b128 v6, {v4(vD)} offset:{L_Y}
    s_mov_b64 exec, -1
    s_waitcnt lgkmcnt(0)
    s_barrier
    s_cmp_eq_u32 s{sWave}, 0
    s_cbranch_scc0 L_end
    v_lshlrev_b32 v6, 4, v{vL}
    ds_read_b128 {v4(vO)}, v6 offset:{L_Y}
    ds_read_b128 {v4(vS)}, v6 offset:{L_Y+1024}
    v_and_b32 v7, 15, v{vL}
    v_lshlrev_b32 v7, 4, v7
    s_add_u32 s{sTmp}, s{sRec}, {R_Y2}
    s_waitcnt lgkmcnt(0)
    ''')
    for k in range(4): A(f'v_add_f32 v{vO+k}, v{vO+k}, v{vS+k}')
    allredrows('v_add_f32', range(vO, vO + 4), range(vS, vS + 4))
    tag4(vO)
    A(f'''
    s_mov_b64 exec, 0xffff
    buffer_store_dwordx4 {v4(vO)}, v7, {srd(rWS)}, s{sTmp} offen sc1
    s_mov_b64 exec, -1
    s_cmp_eq_u32 s{sHK}, s{sS}
    s_cbranch_scc0 L_fin0
    ''')
    A(f'''
    v_lshrrev_b32 v6, 4, v{vL}
    v_lshl_add_u32 v6, v6, 17, v7
    s_lshl_b32 s{sA}, s{sS}, 13
    s_add_u32 s{sA}, s{sA}, {R_Y2}
    s_mov_b32 s{sCnt}, {SPIN}
    ''')
    mksrd(rW, sOUT, 1152)
    mksrd(rX, sWS, 4)
    A(f'L_polly:\ns_mov_b32 s{sTmp}, s{sA}')
    for j in range(4):
        A(f'buffer_load_dwordx4 {v4(vWD+4*j)}, v6, {srd(rWS)}, s{sTmp} offen sc1')
        A(f'buffer_load_dwordx4 {v4(vWD+16+4*j)}, v6, {srd(rWS)}, s{sTmp} offen offset:256 sc1')
        if j < 3: A(f's_add_u32 s{sTmp}, s{sTmp}, {64*REC}')
    A('s_waitcnt vmcnt(0)')
    check_tag([vWD + 4 * j for j in range(8)], vT + 1, 'L_polly')
    for j in range(1, 4):
        for k in range(4): A(f'v_add_f32 v{vWD+k}, v{vWD+k}, v{vWD+4*j+k}')
        for k in range(4): A(f'v_add_f32 v{vWD+16+k}, v{vWD+16+k}, v{vWD+16+4*j+k}')
    rs = list(range(vWD, vWD + 4)) + list(range(vWD + 16, vWD + 20))
    allredrows('v_add_f32', rs, list(range(vWD + 4, vWD + 12)))
    for r in rs: bf16r(r, r)
    A(f'''
    v_lshlrev_b32 v{vS}, 16, v{vQ}
    v_and_b32 v{vS+1}, 0xffff0000, v{vQ}
    v_lshlrev_b32 v{vS+2}, 16, v{vQ+1}
    v_and_b32 v{vS+3}, 0xffff0000, v{vQ+1}
    ''')
    for k in range(4): A(f'v_add_f32 v{vS+k}, v{vS+k}, v{vWD+k}')
    for k in range(4): bf16r(vS + k, vS + k)
    for k in range(4): A(f'v_add_f32 v{vS+k}, v{vS+k}, v{vWD+16+k}')
    A(f'''
    v_cvt_pk_bf16_f32 v{vS}, v{vS}, v{vS+1}
    v_cvt_pk_bf16_f32 v{vS+1}, v{vS+2}, v{vS+3}
    v_lshrrev_b32 v7, 1, v7
    s_lshl_b32 s{sTmp}, s{sS}, 7
    s_mov_b64 exec, 0xffff
    buffer_store_dwordx2 {v2(vS)}, v7, {srd(rW)}, s{sTmp} offen
    s_cmp_eq_u32 s2, 0
    s_cbranch_scc0 L_fin0
    s_mov_b64 exec, 1
    v_mov_b32 v1, s{sTag}
    buffer_store_dword v1, v7, {srd(rX)}, 0 offen sc1
    L_fin0:
    ''')
    if ts:
        A(f's_cmp_eq_u32 s{sWave}, 0\ns_cbranch_scc0 L_end')
        dump_ts(0)
    A('L_end:\ns_endpgm')
    body, pads = fix('\n'.join(o))
    src = HEADER + f'''; Generated by my own generator script (hand-designed instruction stream); D={D}
; @launch grid=(256,1,1) block=(512,1,1) lds={LDS_BYTES}
.amdgcn_target "amdgcn-amd-amdhsa--gfx950"
.text
.globl {NAME}
.p2align 8
.type {NAME},@function
{body}
.section .rodata,"a"
.p2align 6
.amdhsa_kernel {NAME}
  .amdhsa_next_free_vgpr {NV}
  .amdhsa_next_free_sgpr 96
  .amdhsa_accum_offset {(NV+3)//4*4}
  .amdhsa_group_segment_fixed_size 0
  .amdhsa_kernarg_size 96
  .amdhsa_user_sgpr_count 2
  .amdhsa_user_sgpr_kernarg_segment_ptr 1
  .amdhsa_system_sgpr_workgroup_id_x 1
  .amdhsa_float_denorm_mode_32 3
.end_amdhsa_kernel
'''
    return src, NV, pads

if __name__ == '__main__':
    import argparse, ast
    ap = argparse.ArgumentParser()
    ap.add_argument('-o', default='parallel_sum__gqa_block_cached__glu_gated_glu__decode.s')
    ap.add_argument('kw', nargs='*')
    a = ap.parse_args()
    kw = {}
    for x in a.kw:
        k, v = x.split('=', 1)
        try: kw[k] = ast.literal_eval(v)
        except Exception: kw[k] = v
    src, nv, pads = gen(**kw)
    open(a.o, 'w').write(src)
    print('vgprs', nv, 'pad states', pads, 'lines', src.count('\n'))
```

```python
import sys
from hazard import fix

NAME = 'parallel_sum__gqa_block_cached__glu_gated_glu__decode_kernel'
HEADER = open('parallel_sum__gqa_block_cached__glu_gated_glu__decode.s.ref').read().split('; Override launch')[0]

REC = 8192
WS_REC = 65536
R_Q, R_GU, R_O, R_ML, R_YG, R_Y2 = 0, 512, 2816, 3840, 4096, 6400
L_Q, L_O, L_ML, L_Y = 0, 1024, 5120, 5376
LDS_BYTES = 5376 + 2048
NT = 64
LOG2E = 0x3FB8AA3B
SCALE = 0x3DB504F3
INV576 = 0x3AE38E39
EPS = 0x3727C5AC
SPIN = 1 << 18
OOB = 0x7ff00000

def gen(D=6, ts=False, kvflag='nt', vflag=None, wflag='nt', qsleep=0, nomid=False, nocomp=False, nopro=False, late=True, guprio=2, gusleep=16):
    o = []
    def A(s):
        for l in s.strip('\n').split('\n'):
            l = l.strip()
            if not l: continue
            o.append(l if l.endswith(':') else '  ' + l)
    uid = [0]
    def lab(p):
        uid[0] += 1
        return f'L_{p}_{uid[0]}'

    sX, sK, sV, sWQ, sWO, sGATE, sUP, sDOWN, sOUT, sDBG, sWS = 4, 6, 8, 10, 12, 16, 18, 20, 22, 24, 26
    rK, rV, rX, rW, rWS = 28, 32, 36, 40, 44
    rW2 = rK
    sTag = 48
    sWave, sHK, sS = 3, 52, 53
    sT, sRnd, sTmp, sTmp2, sCnt, sRec, sGrp = 54, 55, 56, 57, 58, 59, 60
    sHI, sL2E, sSC = 62, 64, 65
    sA, sB = 66, 67
    sTS = 70
    def srd(r): return f's[{r}:{r+3}]'
    vL, vKo, vVo, vFF = 0, 4, 5, 50
    vM = 8; vQ = 12; vO = 28; vS = 32; vB = 36; vB2 = 40
    vm, vmL, vl = 44, 45, 46
    vT = 47
    vD = 60; vD1 = 56
    vW = 64
    vSl = 64
    NV = max(vSl + 32 * D, 220)
    def v4(r): return f'v[{r}:{r+3}]'
    def v2(r): return f'v[{r}:{r+1}]'

    def stamp(i):
        if ts: A(f's_memrealtime s[{sTS+2*i}:{sTS+2*i+1}]')
    def dump_ts(slot):
        if not ts: return
        A('s_mov_b64 exec, -1')
        stamp(7)
        A(f's_waitcnt lgkmcnt(0)')
        A(f's_add_u32 s28, s{sWS}, 0x20000000\ns_addc_u32 s29, s{sWS+1}, 0\ns_mov_b32 s30, 0x100000\ns_mov_b32 s31, 0x20000')
        A(f's_lshl_b32 s{sTmp}, s2, 8\ns_add_u32 s{sTmp}, s{sTmp}, {slot*64}\nv_mov_b32 v1, 0')
        for i in range(8):
            A(f'v_mov_b32 v2, s{sTS+2*i}\nbuffer_store_dword v2, v1, s[28:31], s{sTmp} offen offset:{4*i}')

    def allred16(op, r):
        for m in ('quad_perm:[1,0,3,2]', 'quad_perm:[2,3,0,1]', 'row_half_mirror', 'row_mirror'):
            A(f'{op}_dpp v{r}, v{r}, v{r} {m} row_mask:0xf bank_mask:0xf')
    def allred8(op, rs):
        for m in ('quad_perm:[1,0,3,2]', 'quad_perm:[2,3,0,1]', 'row_half_mirror'):
            for r in rs:
                A(f'{op}_dpp v{r}, v{r}, v{r} {m} row_mask:0xf bank_mask:0xf')
    def allredrows(op, rs, ts_):
        for sw in ('v_permlane16_swap_b32', 'v_permlane32_swap_b32'):
            for r, t in zip(rs, ts_): A(f'v_mov_b32 v{t}, v{r}')
            for r, t in zip(rs, ts_): A(f'{sw} v{r}, v{t}')
            for r, t in zip(rs, ts_): A(f'{op} v{r}, v{r}, v{t}')
    def bf16r(dst, src):
        A(f'v_cvt_pk_bf16_f32 v{dst}, v{src}, v{src}\nv_lshlrev_b32 v{dst}, 16, v{dst}')
    def diag(dst, src):
        for w in range(4): A(f'v_and_b32 v{dst+w}, v{src}, v{vM+w}')
    def tag4(r):
        for k in range(4): A(f'v_bfi_b32 v{r+k}, v{vFF}, s{sTag+k}, v{r+k}')
    def check_tag(grans, t, retry):
        first = True
        for g in grans:
            for k in range(4):
                if first: A(f'v_xor_b32 v{t}, s{sTag+k}, v{g+k}'); first = False
                else: A(f'v_bitop3_b32 v{t}, v{t}, v{g+k}, s{sTag+k} bitop3:0xf6')
        done = lab('got')
        A(f'v_and_b32 v{t}, 0xff, v{t}\nv_cmp_ne_u32 vcc, 0, v{t}\ns_cbranch_vccz {done}')
        A(f's_sub_u32 s{sCnt}, s{sCnt}, 1\ns_cbranch_scc0 {retry}\n{done}:')
    def diagadd(dst):
        for k in range(4): A(f'v_mov_b32 v{vD1+k}, v{vD+k}')
        for k in range(4): A(f'v_permlane32_swap_b32 v{vD+k}, v{vD1+k}')
        for k in range(4): A(f'v_add_f32_dpp v{dst+k}, v{vD1+k}, v{vD+k} row_ror:8 row_mask:0xf bank_mask:0xf')
    def mksrd(r, ptr, size):
        A(f's_mov_b32 s{r}, s{ptr}\ns_mov_b32 s{r+1}, s{ptr+1}\ns_mov_b32 s{r+2}, {size}\ns_mov_b32 s{r+3}, 0x20000')

    def kv_loads(d):
        r = vSl + 32 * d
        for j in range(4): A(f'buffer_load_dwordx4 {v4(r+4*j)}, v{vKo}, {srd(rK)}, s{sT} offen offset:{64*j} {kvflag}')
        for j in range(4): A(f'buffer_load_dwordx4 {v4(r+16+4*j)}, v{vVo}, {srd(rV)}, s{sT} offen offset:{256*j} {kvflag if vflag is None else vflag}')
        A(f's_add_u32 s{sT}, s{sT}, {64*4096}')
    def masks():
        A(f'''
        v_and_b32 v{vT}, 1, v{vL}
        v_lshlrev_b32 v{vT}, 4, v{vT}
        v_mov_b32 v{vT+1}, 0xffff
        v_lshlrev_b32 v{vT}, v{vT}, v{vT+1}
        v_bfe_u32 v{vT+1}, v{vL}, 1, 2
        ''')
        for w in range(4):
            A(f'v_cmp_eq_u32 vcc, {w}, v{vT+1}\nv_cndmask_b32 v{vM+w}, 0, v{vT}, vcc')
    def common_setup():
        A(f'''
        s_lshl_b32 s{sRec}, s2, 13
        s_lshl_b32 s{sGrp}, s{sHK}, 17
        s_mov_b32 s{sHI}, 0
        s_mov_b32 s{sHI+1}, -1
        s_mov_b32 s{sL2E}, {LOG2E:#x}
        s_mov_b32 s{sSC}, {SCALE:#x}
        s_add_u32 s{rWS}, s{sWS}, {WS_REC}
        s_addc_u32 s{rWS+1}, s{sWS+1}, 0
        s_mov_b32 s{rWS+2}, {256*REC}
        s_mov_b32 s{rWS+3}, 0x20000
        ''')
    def kv_setup():
        A(f'''
        v_and_b32 v{vT}, 15, v{vL}
        v_lshrrev_b32 v{vT+1}, 4, v{vL}
        s_lshl_b32 s{sT}, s{sS}, 2
        s_add_u32 s{sT}, s{sT}, s{sWave}
        s_sub_u32 s{sT}, s{sT}, 4
        s_lshl_b32 s{sT}, s{sT}, 12
        v_lshlrev_b32 v{vKo}, 8, v{vT}
        v_lshl_add_u32 v{vKo}, v{vT+1}, 4, v{vKo}
        v_lshlrev_b32 v{vVo}, 10, v{vT+1}
        v_lshl_add_u32 v{vVo}, v{vT}, 4, v{vVo}
        s_lshl_b32 s{sTmp2}, s{sHK}, 24
        s_add_u32 s{rK}, s{sK}, s{sTmp2}
        s_addc_u32 s{rK+1}, s{sK+1}, 0
        s_mov_b32 s{rK+2}, 0x1000000
        s_mov_b32 s{rK+3}, 0x20000
        s_add_u32 s{rV}, s{sV}, s{sTmp2}
        s_addc_u32 s{rV+1}, s{sV+1}, 0
        s_mov_b32 s{rV+2}, 0x1000000
        s_mov_b32 s{rV+3}, 0x20000
        ''')
    def tag_setup():
        A(f'''
        s_waitcnt lgkmcnt(0)
        s_add_u32 s{sTag}, s{sTag}, 0x04030201
        s_lshr_b32 s{sTag+1}, s{sTag}, 8
        s_lshr_b32 s{sTag+2}, s{sTag}, 16
        s_lshr_b32 s{sTag+3}, s{sTag}, 24
        ''')
    vX4, vX1 = 52, 51
    a, b, c_ = 38, 39, 40
    def ln_stats():
        f = 28
        for k in range(4):
            A(f'v_lshlrev_b32 v{f+2*k}, 16, v{vX4+k}\nv_and_b32 v{f+2*k+1}, 0xffff0000, v{vX4+k}')
        A(f'v_lshlrev_b32 v{f+8}, 16, v{vX1}\nv_and_b32 v{f+9}, 0xffff0000, v{vX1}')
        A(f'v_add_f32 v{a}, v{f}, v{f+1}\nv_add_f32 v{b}, v{f+2}, v{f+3}')
        for k in (4, 6, 8): A(f'v_add_f32 v{a}, v{a}, v{f+k}\nv_add_f32 v{b}, v{b}, v{f+k+1}')
        A(f'v_add_f32 v{a}, v{a}, v{b}')
        allred16('v_add_f32', a); allredrows('v_add_f32', [a], [b])
        A(f'v_mul_f32 v{a}, {INV576:#x}, v{a}')
        for k in range(10): A(f'v_sub_f32 v{f+k}, v{f+k}, v{a}')
        A(f'v_cndmask_b32 v{f+8}, v{f+8}, 0, s[{sHI}:{sHI+1}]\nv_cndmask_b32 v{f+9}, v{f+9}, 0, s[{sHI}:{sHI+1}]')
        A(f'v_mul_f32 v{b}, v{f}, v{f}\nv_mul_f32 v{c_}, v{f+1}, v{f+1}')
        for k in (2, 4, 6, 8): A(f'v_fmac_f32 v{b}, v{f+k}, v{f+k}\nv_fmac_f32 v{c_}, v{f+k+1}, v{f+k+1}')
        A(f'v_add_f32 v{b}, v{b}, v{c_}')
        allred16('v_add_f32', b); allredrows('v_add_f32', [b], [c_])
        A(f'v_mul_f32 v{b}, {INV576:#x}, v{b}')
        bf16r(a, a); bf16r(b, b)
        A(f'v_add_f32 v{b}, {EPS:#x}, v{b}'); bf16r(b, b)
        A(f'v_sqrt_f32 v{b}, v{b}'); bf16r(b, b)
        A(f'v_rcp_f32 v{b}, v{b}')
    def normalize(rs):
        for r in rs: A(f'v_sub_f32 v{r}, v{r}, v{a}')
        for r in rs: A(f'v_cvt_pk_bf16_f32 v{r}, v{r}, v{r}')
        for r in rs: A(f'v_lshlrev_b32 v{r}, 16, v{r}')
        for r in rs: A(f'v_mul_f32 v{r}, v{r}, v{b}')
        for r in rs: A(f'v_cvt_pk_bf16_f32 v{r}, v{r}, v{r}')
    def xstat_loads():
        A(f'''
        buffer_load_dwordx4 {v4(vX4)}, v7, {srd(rX)}, 0 offen
        buffer_load_dword v{vX1}, v6, {srd(rX)}, 0 offen offset:1024
        ''')

    A(f'{NAME}:')
    A(f'''
    s_cmp_ge_u32 s2, 256
    s_cbranch_scc1 L_end
    s_load_dwordx16 s[4:19], s[0:1], 0
    s_load_dwordx8 s[20:27], s[0:1], 64
    ''')
    if ts:
        for i in range(16): A(f's_mov_b32 s{sTS+i}, 0')
    stamp(0)
    A(f'''
    v_lshrrev_b32 v1, 6, v0
    v_and_b32 v{vL}, 63, v0
    v_readfirstlane_b32 s{sWave}, v1
    s_lshr_b32 s{sHK}, s2, 4
    s_and_b32 s{sS}, s2, 15
    v_lshlrev_b32 v7, 4, v{vL}
    v_lshlrev_b32 v6, 2, v{vL}
    s_mov_b32 s{rX+2}, 1152
    s_mov_b32 s{rX+3}, 0x20000
    s_mov_b32 s{rW+3}, 0x20000
    s_cmp_ge_u32 s{sWave}, 4
    s_cbranch_scc1 L_stream
    s_cmp_eq_u32 s{sWave}, 0
    s_cbranch_scc0 L_notw0
    ''')
    if nopro: o[-2:] = ['  s_branch L_end']
    vXP = 64
    vXD0 = 74
    vWQ = 100
    A(f'''
    s_setprio 3
    v_lshrrev_b32 v1, 3, v{vL}
    v_and_b32 v2, 7, v{vL}
    s_lshr_b32 s{sTmp}, s{sS}, 2
    s_mul_i32 s{sTmp}, s{sTmp}, 144
    v_mad_u32_u24 v1, v1, 18, s{sTmp}
    v_lshlrev_b32 v3, 13, v1
    v_lshl_add_u32 v3, v2, 4, v3
    v_lshlrev_b32 v1, 1, v1
    s_and_b32 s{sTmp}, s{sS}, 3
    s_lshl_b32 s{sTmp}, s{sTmp}, 7
    s_lshl_b32 s{sTmp2}, s{sHK}, 9
    s_add_u32 s{sTmp}, s{sTmp}, s{sTmp2}
    s_mov_b32 s{rW+2}, {576*8192}
    s_waitcnt lgkmcnt(0)
    s_mov_b32 s{rX}, s{sX}
    s_mov_b32 s{rX+1}, s{sX+1}
    s_mov_b32 s{rW}, s{sWQ}
    s_mov_b32 s{rW+1}, s{sWQ+1}
    s_load_dword s{sTag}, s[{sWS}:{sWS+1}], 0
    ''')
    xstat_loads()
    A(f'''
    buffer_load_dwordx4 {v4(vXP)}, v1, {srd(rX)}, 0 offen
    buffer_load_dwordx4 {v4(vXP+4)}, v1, {srd(rX)}, 0 offen offset:16
    buffer_load_dword v{vXP+8}, v1, {srd(rX)}, 0 offen offset:32
    ''')
    for j in range(18):
        A(f'buffer_load_dwordx4 {v4(vWQ+4*j)}, v3, {srd(rW)}, s{sTmp} offen {wflag}')
        if j < 17: A(f's_add_u32 s{sTmp}, s{sTmp}, 8192')
    common_setup(); masks()
    A(f'''
    v_mov_b32 v{vFF}, 0xff
    v_bfe_u32 v3, v{vL}, 4, 1
    v_lshlrev_b32 v3, 5, v3
    v_lshl_add_u32 v3, v2, 6, v3
    v_lshrrev_b32 v2, 5, v{vL}
    v_lshl_add_u32 v3, v2, 4, v3
    v_lshrrev_b32 v2, 4, v{vL}
    v_and_b32 v1, 15, v{vL}
    v_lshlrev_b32 v1, 5, v1
    v_lshl_add_u32 v1, v2, 13, v1
    v_lshlrev_b32 v2, 3, v{vL}
    ''')
    tag_setup()
    A('s_waitcnt vmcnt(18)')
    stamp(1)
    ln_stats()
    for i in range(9):
        A(f'v_lshlrev_b32 v{vXD0+2*i}, 16, v{vXP+i}\nv_and_b32 v{vXD0+2*i+1}, 0xffff0000, v{vXP+i}')
    normalize(range(vXD0, vXD0 + 18))
    for j in range(18):
        bb = vB if j % 2 == 0 else vB2
        diag(bb, vXD0 + j)
        if j % 6 == 0: A(f's_waitcnt vmcnt({12-j})')
        A(f'v_mfma_f32_16x16x32_bf16 {v4(vD)}, {v4(bb)}, {v4(vWQ+4*j)}, {"0" if j == 0 else v4(vD)}')
    stamp(2)
    diagadd(vO)
    A(f'''
    v_cndmask_b32 v{vS}, v{vO}, v{vO+2}, s[{sHI}:{sHI+1}]
    v_mov_b32 v{vS+1}, s{sTag}
    v_cndmask_b32 v{vS+2}, v{vO+1}, v{vO+3}, s[{sHI}:{sHI+1}]
    v_mov_b32 v{vS+3}, s{sTag}
    s_mov_b32 exec_lo, 0x00ff00ff
    s_mov_b32 exec_hi, 0x00ff00ff
    buffer_store_dwordx4 {v4(vS)}, v3, {srd(rWS)}, s{sRec} offen sc1
    s_mov_b64 exec, -1
    s_add_u32 s{sA}, s{sGrp}, {4*REC}
    s_add_u32 s{sB}, s{sGrp}, {8*REC}
    s_add_u32 s{sTmp}, s{sGrp}, {12*REC}
    s_mov_b32 s{sCnt}, {SPIN}
    ''')
    stamp(3)
    A('L_pollq:')
    if qsleep: A(f's_sleep {qsleep}')
    for p, so in enumerate((sGrp, sA, sB, sTmp)):
        A(f'buffer_load_dwordx4 {v4(vW+8*p)}, v1, {srd(rWS)}, s{so} offen sc1')
        A(f'buffer_load_dwordx4 {v4(vW+8*p+4)}, v1, {srd(rWS)}, s{so} offen offset:16 sc1')
    A('s_waitcnt vmcnt(0)')
    A(f'v_xor_b32 v{vT}, s{sTag}, v{vW+1}')
    for k in range(3, 32, 2): A(f'v_bitop3_b32 v{vT}, v{vT}, v{vW+k}, s{sTag} bitop3:0xf6')
    A(f'''
    v_cmp_ne_u32 vcc, 0, v{vT}
    s_cbranch_vccz L_gotq
    s_sub_u32 s{sCnt}, s{sCnt}, 1
    s_cbranch_scc0 L_pollq
    L_gotq:
    ''')
    stamp(4)
    for k in range(0, 8, 2): A(f'v_add_f32 v{vW+k}, v{vW+k}, v{vW+8+k}')
    for k in range(0, 8, 2): A(f'v_add_f32 v{vW+16+k}, v{vW+16+k}, v{vW+24+k}')
    for k in range(0, 8, 2): A(f'v_add_f32 v{vW+k}, v{vW+k}, v{vW+16+k}')
    A(f'''
    v_cvt_pk_bf16_f32 v{vS}, v{vW}, v{vW+2}
    v_cvt_pk_bf16_f32 v{vS+1}, v{vW+4}, v{vW+6}
    ds_write_b64 v2, {v2(vS)} offset:{L_Q}
    s_waitcnt lgkmcnt(0)
    s_barrier
    s_setprio {guprio}
    s_branch L_g1
    ''')
    vXD = vQ
    A(f'''
    L_notw0:
    s_setprio {guprio}
    v_and_b32 v1, 15, v{vL}
    v_lshrrev_b32 v2, 4, v{vL}
    s_mul_i32 s{sTmp}, s{sS}, 36
    v_add_u32 v2, s{sTmp}, v2
    s_mul_i32 s{sTmp}, s{sHK}, 576
    s_cmp_eq_u32 s{sWave}, 3
    s_cselect_b32 s{sB}, 4, 16
    s_cselect_b32 s{sCnt}, 512, 0
    s_cselect_b32 s{sRnd}, 0, 256
    s_movk_i32 s{sT}, 512
    s_cselect_b32 s{sT}, 1152, s{sT}
    s_cselect_b32 s{sA}, 1024, 0
    s_add_u32 s{sTmp}, s{sTmp}, s{sCnt}
    s_add_u32 s{sTmp2}, s{sTmp}, s{sRnd}
    v_mul_u32_u24 v3, 9216, v2
    v_lshl_add_u32 v3, v1, 4, v3
    v_cmp_gt_u32 vcc, s{sB}, v1
    v_mov_b32 v{vT}, {OOB:#x}
    v_cndmask_b32 v3, v{vT}, v3, vcc
    v_lshlrev_b32 v2, 1, v2
    s_mov_b32 s{rW+2}, {576*9216}
    s_mov_b32 s{rW2+2}, {576*9216}
    s_mov_b32 s{rW2+3}, 0x20000
    s_waitcnt lgkmcnt(0)
    s_mov_b32 s{rX}, s{sX}
    s_mov_b32 s{rX+1}, s{sX+1}
    s_cmp_eq_u32 s{sWave}, 2
    s_cselect_b32 s{rW}, s{sUP}, s{sGATE}
    s_cselect_b32 s{rW+1}, s{sUP+1}, s{sGATE+1}
    s_cselect_b32 s{sA}, 1152, s{sA}
    s_cmp_eq_u32 s{sWave}, 1
    s_cselect_b32 s{rW2}, s{sGATE}, s{sUP}
    s_cselect_b32 s{rW2+1}, s{sGATE+1}, s{sUP+1}
    s_load_dword s{sTag}, s[{sWS}:{sWS+1}], 0
    ''')
    xstat_loads()
    for j in range(9): A(f'buffer_load_ushort v{vXD+j}, v2, {srd(rX)}, 0 offen offset:{8*j}')
    for j in range(9):
        A(f'buffer_load_dwordx4 {v4(vW+8*j)}, v3, {srd(rW)}, s{sTmp} offen {wflag}')
        A(f'buffer_load_dwordx4 {v4(vW+8*j+4)}, v3, {srd(rW2)}, s{sTmp2} offen {wflag}')
        if j < 8: A(f's_add_u32 s{sTmp}, s{sTmp}, {4*9216}\ns_add_u32 s{sTmp2}, s{sTmp2}, {4*9216}')
    common_setup(); masks()
    A(f'''
    v_mov_b32 v{vFF}, 0xff
    s_add_u32 s{sA}, s{sA}, s{sRec}
    v_cmp_gt_u32 vcc, s{sB}, v1
    v_lshlrev_b32 v1, 5, v1
    v_bfe_u32 v2, v{vL}, 4, 1
    v_lshl_add_u32 v1, v2, 4, v1
    v_lshrrev_b32 v2, 5, v{vL}
    v_mad_u32_u24 v1, v2, s{sT}, v1
    v_mov_b32 v2, {OOB:#x}
    v_cndmask_b32 v1, v2, v1, vcc
    ''')
    tag_setup()
    A(f's_waitcnt vmcnt(18)')
    ln_stats()
    for j in range(9): A(f'v_lshlrev_b32 v{vXD+j}, 16, v{vXD+j}')
    normalize(range(vXD, vXD + 9))
    for j in range(9):
        bb = vB if j % 2 == 0 else vB2
        diag(bb, vXD + j)
        if j % 3 == 0: A(f's_waitcnt vmcnt({12-2*j})')
        A(f'v_mfma_f32_16x16x32_bf16 {v4(vD)}, {v4(bb)}, {v4(vW+8*j)}, {"0" if j == 0 else v4(vD)}')
        A(f'v_mfma_f32_16x16x32_bf16 {v4(vD1)}, {v4(bb)}, {v4(vW+8*j+4)}, {"0" if j == 0 else v4(vD1)}')
    for k in range(4): A(f'v_cndmask_b32 v{vD+k}, v{vD+k}, v{vD1+k}, s[{sHI}:{sHI+1}]')
    tag4(vD)
    A(f'''
    buffer_store_dwordx4 {v4(vD)}, v1, {srd(rWS)}, s{sA} offen offset:{R_GU} sc1
    s_barrier
    s_branch L_g1
    L_stream:
    s_setprio 1
    s_waitcnt lgkmcnt(0)
    s_load_dword s{sTag}, s[{sWS}:{sWS+1}], 0
    ''')
    kv_setup()
    for d in range(D): kv_loads(d)
    stamp(1)
    common_setup(); masks()
    A(f'v_mov_b32 v{vFF}, 0xff')
    tag_setup()
    A('s_barrier')
    A(f'''
    L_main:
    v_bfe_u32 v1, v{vL}, 3, 1
    v_lshrrev_b32 v2, 4, v{vL}
    v_lshlrev_b32 v1, 8, v1
    v_lshl_add_u32 v1, v2, 4, v1
    ''')
    for j in range(4): A(f'ds_read_b128 {v4(vQ+4*j)}, v1 offset:{L_Q+64*j}')
    stamp(3)
    NR = -(-NT // D)
    dlast = (NT - 1) % D
    def rnd_of(t): return NR - 1 - t // D
    for k in range(4): A(f'v_mov_b32 v{vO+k}, 0')
    A(f'''
    v_mov_b32 v{vm}, 0xf149f2ca
    v_mov_b32 v{vl}, 0
    v_mul_f32 v{vmL}, s{sL2E}, v{vm}
    s_mov_b32 s{sRnd}, {NR - 1}
    s_waitcnt lgkmcnt(0)
    L_loop:
    ''')
    ool = []
    t0, t1, tm = vT, vT + 1, vT + 2
    for d in range(D):
        r = vSl + 32 * d
        tl = max(t for t in range(NT) if t % D == d)
        younger = min(D - 1, NT - 1 - tl)
        def wait(extra, tag):
            a_, b_ = 8*(D-1)+extra, 8*younger+extra
            if a_ == b_:
                A(f's_waitcnt vmcnt({a_})')
            else:
                A(f's_cmp_eq_u32 s{sRnd}, {rnd_of(tl)}\ns_cbranch_scc1 L_{tag}l{d}\ns_waitcnt vmcnt({a_})\nL_{tag}b{d}:')
                ool.append(f'L_{tag}l{d}:\ns_waitcnt vmcnt({b_})\ns_branch L_{tag}b{d}')
        def refill():
            A(f's_cbranch_scc1 {"L_post" if d == dlast else f"L_norf{d}"}')
            kv_loads(d)
            if late and d == dlast:
                A(f's_cmp_eq_u32 s{sRnd}, 1\ns_cbranch_scc1 L_late\nL_lateb:')
                ool.append('L_late:\ns_barrier\ns_branch L_lateb')
            A(f'L_norf{d}:')
        wait(4, 'wk')
        if nocomp:
            wait(0, 'wv')
            A(f's_cmp_eq_u32 s{sRnd}, {rnd_of(tl)}')
            refill()
            continue
        for j in range(4):
            A(f'v_mfma_f32_16x16x32_bf16 {v4(vS)}, {v4(r+4*j)}, {v4(vQ+4*j)}, {"0" if j == 0 else v4(vS)}')
        def rnd():
            A(f'''
            v_cvt_pk_bf16_f32 v{t0}, v{vS}, v{vS+1}
            v_cvt_pk_bf16_f32 v{t1}, v{vS+2}, v{vS+3}
            v_lshlrev_b32 v{vS}, 16, v{t0}
            v_and_b32 v{vS+1}, 0xffff0000, v{t0}
            v_lshlrev_b32 v{vS+2}, 16, v{t1}
            v_and_b32 v{vS+3}, 0xffff0000, v{t1}
            ''')
        rnd()
        for k in range(4): A(f'v_mul_f32 v{vS+k}, s{sSC}, v{vS+k}')
        rnd()
        A(f'''
        v_max3_f32 v{tm}, v{vS}, v{vS+1}, v{vS+2}
        v_max_f32 v{tm}, v{tm}, v{vS+3}
        v_cmp_gt_f32 vcc, v{tm}, v{vm}
        s_cbranch_vccnz L_upd{d}
        L_updb{d}:
        ''')
        ool.append(f'''
        L_upd{d}:
        v_mov_b32 v{t0}, v{tm}
        v_permlane16_swap_b32 v{tm}, v{t0}
        v_max_f32 v{tm}, v{tm}, v{t0}
        v_mov_b32 v{t0}, v{tm}
        v_permlane32_swap_b32 v{tm}, v{t0}
        v_max3_f32 v{vm}, v{vm}, v{tm}, v{t0}
        v_mul_f32 v{t0}, s{sL2E}, v{vm}
        v_sub_f32 v{t1}, v{vmL}, v{t0}
        v_exp_f32 v{t1}, v{t1}
        v_mov_b32 v{vmL}, v{t0}
        v_mul_f32 v{vl}, v{vl}, v{t1}
        v_mul_f32 v{vO}, v{vO}, v{t1}
        v_mul_f32 v{vO+1}, v{vO+1}, v{t1}
        v_mul_f32 v{vO+2}, v{vO+2}, v{t1}
        v_mul_f32 v{vO+3}, v{vO+3}, v{t1}
        s_branch L_updb{d}
        ''')
        for k in range(4): A(f'v_fma_f32 v{vS+k}, v{vS+k}, s{sL2E}, -v{vmL}')
        for k in range(4): A(f'v_exp_f32 v{vS+k}, v{vS+k}')
        A(f'v_add_f32 v{t0}, v{vS}, v{vS+1}\nv_add_f32 v{t1}, v{vS+2}, v{vS+3}')
        for k in range(4): A(f'v_cvt_pk_bf16_f32 v{vS+k}, v{vS+k}, v{vS+k}')
        A(f'v_add_f32 v{vl}, v{vl}, v{t0}\nv_add_f32 v{vl}, v{vl}, v{t1}')
        diag(vB, vS); diag(vB2, vS + 1)
        wait(0, 'wv')
        A(f'v_mfma_f32_16x16x32_bf16 {v4(vO)}, {v4(r+16)}, {v4(vB)}, {v4(vO)}')
        diag(vB, vS + 2)
        A(f'v_mfma_f32_16x16x32_bf16 {v4(vO)}, {v4(r+20)}, {v4(vB2)}, {v4(vO)}')
        diag(vB2, vS + 3)
        A(f'v_mfma_f32_16x16x32_bf16 {v4(vO)}, {v4(r+24)}, {v4(vB)}, {v4(vO)}')
        A(f's_cmp_eq_u32 s{sRnd}, {rnd_of(tl)}')
        A(f'v_mfma_f32_16x16x32_bf16 {v4(vO)}, {v4(r+28)}, {v4(vB2)}, {v4(vO)}')
        refill()
    A(f'''
    s_sub_u32 s{sRnd}, s{sRnd}, 1
    s_branch L_loop
    ''')
    for b_ in ool: A(b_)
    A('L_post:')
    stamp(5)
    allredrows('v_add_f32', [vl], [t0])
    A(f'''
    v_lshlrev_b32 v1, 4, v{vL}
    s_sub_u32 s{sTmp2}, s{sWave}, 4
    s_lshl_b32 s{sTmp}, s{sTmp2}, 10
    v_add_u32 v2, s{sTmp}, v1
    ds_write_b128 v2, {v4(vO)} offset:{L_O}
    v_bfe_u32 v3, v{vL}, 3, 1
    v_lshlrev_b32 v3, 3, v3
    s_lshl_b32 s{sTmp}, s{sTmp2}, 4
    v_add_u32 v2, s{sTmp}, v3
    v_mov_b32 v{vS}, v{vmL}
    v_mov_b32 v{vS+1}, v{vl}
    ds_write_b64 v2, {v2(vS)} offset:{L_ML}
    s_waitcnt lgkmcnt(0)
    s_barrier
    s_cmp_eq_u32 s{sWave}, 4
    s_cbranch_scc0 L_end
    ''')
    stamp(6)
    if ts: A('s_waitcnt lgkmcnt(0)')
    vA = 80
    for i in range(4): A(f'ds_read_b64 {v2(vW+2*i)}, v3 offset:{L_ML+16*i}')
    for i in range(4): A(f'ds_read_b128 {v4(vA+4*i)}, v1 offset:{L_O+1024*i}')
    A(f'''
    v_lshrrev_b32 v2, 4, v{vL}
    v_and_b32 v6, 7, v{vL}
    v_lshlrev_b32 v2, 7, v2
    v_lshl_add_u32 v2, v6, 4, v2
    v_lshl_add_u32 v2, v3, 6, v2
    v_lshlrev_b32 v3, 1, v3
    v_mov_b32 v{vS+2}, s{sTag+2}
    v_mov_b32 v{vS+3}, s{sTag+3}
    s_waitcnt lgkmcnt(4)
    v_max3_f32 v{vS}, v{vW}, v{vW+2}, v{vW+4}
    v_max_f32 v{vS}, v{vS}, v{vW+6}
    v_bfi_b32 v{vS}, v{vFF}, s{sTag}, v{vS}
    ''')
    for i in range(4): A(f'v_sub_f32 v{vW+2*i}, v{vW+2*i}, v{vS}')
    for i in range(4): A(f'v_exp_f32 v{vW+2*i}, v{vW+2*i}')
    A(f'v_mul_f32 v{vS+1}, v{vW}, v{vW+1}')
    for i in range(1, 4): A(f'v_fmac_f32 v{vS+1}, v{vW+2*i}, v{vW+2*i+1}')
    A(f'v_bfi_b32 v{vS+1}, v{vFF}, s{sTag+1}, v{vS+1}')
    A('s_waitcnt lgkmcnt(0)')
    for k in range(4): A(f'v_mul_f32 v{vO+k}, v{vW}, v{vA+k}')
    for i in range(1, 4):
        for k in range(4): A(f'v_fmac_f32 v{vO+k}, v{vW+2*i}, v{vA+4*i+k}')
    tag4(vO)
    A(f'''
    buffer_store_dwordx4 {v4(vO)}, v2, {srd(rWS)}, s{sRec} offen offset:{R_O} sc1
    s_mov_b64 exec, 0x101
    buffer_store_dwordx4 {v4(vS)}, v3, {srd(rWS)}, s{sRec} offen offset:{R_ML} sc1
    ''')
    dump_ts(1)
    A('s_endpgm')
    vWD, vG, vWO, vP = 100, 148, 164, 196
    A('L_g1:')
    if nomid: A('s_branch L_fin0')
    mksrd(rW, sDOWN, 4608*1152)
    A(f'''
    v_lshrrev_b32 v1, 3, v{vL}
    v_and_b32 v2, 7, v{vL}
    s_and_b32 s{sA}, s{sS}, 1
    s_sub_u32 s{sB}, 5, s{sA}
    s_mul_i32 s{sA}, s{sA}, 20
    s_lshr_b32 s{sTmp}, s{sS}, 1
    s_mul_i32 s{sTmp}, s{sTmp}, 36
    s_add_u32 s{sA}, s{sA}, s{sTmp}
    v_mul_u32_u24 v6, 4608, v1
    v_lshl_add_u32 v6, v2, 4, v6
    v_cmp_gt_u32 vcc, s{sB}, v1
    v_mov_b32 v{vT}, {OOB:#x}
    v_cndmask_b32 v6, v{vT}, v6, vcc
    v_cndmask_b32 v7, 0, v1, vcc
    s_mul_i32 s{sTmp}, s{sHK}, 288
    s_add_u32 s{sTmp}, s{sTmp}, s{sA}
    s_mul_i32 s{sTmp}, s{sTmp}, 1152
    s_lshl_b32 s{sTmp2}, s{sWave}, 7
    s_add_u32 s{sTmp}, s{sTmp}, s{sTmp2}
    s_add_u32 s{sTmp2}, s{sTmp}, 1024
    ''')
    for ci in range(3):
        if ci == 2: A(f's_cmp_eq_u32 s{sWave}, 0\ns_cbranch_scc0 L_nowd')
        for j in range(4):
            A(f'buffer_load_dwordx4 {v4(vWD+16*ci+4*j)}, v6, {srd(rW)}, s{sTmp2 if ci == 2 else sTmp} offen offset:{512*(ci%2)+1152*j} {wflag}')
    A(f'''
    L_nowd:
    v_lshlrev_b32 v7, 4, v7
    v_lshl_add_u32 v7, v2, 13, v7
    s_lshl_b32 s{sTmp}, s{sA}, 2
    s_add_u32 s{sTmp}, s{sTmp}, s{sGrp}
    s_add_u32 s{sTmp2}, s{sTmp}, {8*REC}
    s_mov_b32 s{sCnt}, {SPIN}
    L_pollgu:
    s_sleep {gusleep}
    ''')
    for hf, so in enumerate((sTmp, sTmp2)):
        for mat in range(2):
            A(f'buffer_load_dwordx4 {v4(vG+8*hf+4*mat)}, v7, {srd(rWS)}, s{so} offen offset:{R_GU+1152*mat} sc1')
    A('s_waitcnt vmcnt(0)')
    check_tag([vG + 4 * k for k in range(4)], vT + 1, 'L_pollgu')
    for k in range(8): A(f'v_add_f32 v{vG+k}, v{vG+k}, v{vG+8+k}')
    allred8('v_add_f32', range(vG, vG + 8))
    for k in range(8): bf16r(vG + k, vG + k)
    for k in range(4): A(f'v_mul_f32 v{vG+k}, s{sL2E}, v{vG+k}')
    for k in range(4): A(f'v_exp_f32 v{vG+k}, -v{vG+k}')
    for k in range(4): A(f'v_add_f32 v{vG+k}, 1.0, v{vG+k}')
    for k in range(4): A(f'v_rcp_f32 v{vG+k}, v{vG+k}')
    for k in range(4): bf16r(vG + k, vG + k)
    for k in range(4): A(f'v_mul_f32 v{vG+k}, v{vG+k}, v{vG+4+k}')
    for k in range(4): A(f'v_cvt_pk_bf16_f32 v{vG+k}, v{vG+k}, v{vG+k}')
    hb = [vB, vB2, vS, vG + 8]
    for k in range(4): diag(hb[k], vG + k)
    A(f'''
    v_bfe_u32 v3, v{vL}, 4, 1
    v_lshlrev_b32 v3, 4, v3
    v_lshl_add_u32 v3, v2, 5, v3
    s_lshl_b32 s{sTmp}, s{sWave}, 8
    s_add_u32 s{sTmp}, s{sTmp}, s{sRec}
    s_add_u32 s{sTmp}, s{sTmp}, {R_YG}
    ''')
    for ci in range(3):
        if ci == 2: A(f's_cmp_eq_u32 s{sWave}, 0\ns_cbranch_scc0 L_g1done')
        for j in range(4):
            A(f'v_mfma_f32_16x16x32_bf16 {v4(vD)}, {v4(hb[j])}, {v4(vWD+16*ci+4*j)}, {"0" if j == 0 else v4(vD)}')
        diagadd(vO); tag4(vO)
        A(f's_mov_b64 exec, 0x00ff00ff\nbuffer_store_dwordx4 {v4(vO)}, v3, {srd(rWS)}, s{sTmp} offen offset:{1024*ci} sc1\ns_mov_b64 exec, -1')
    A(f'''
    L_g1done:
    s_cmp_ge_u32 s{sS}, 9
    s_cbranch_scc1 L_fin0
    s_cmp_eq_u32 s{sWave}, 1
    s_cbranch_scc0 L_nog2
    ''')
    A(f'''
    v_lshrrev_b32 v6, 4, v{vL}
    v_and_b32 v7, 15, v{vL}
    v_lshlrev_b32 v7, 4, v7
    v_lshl_add_u32 v6, v6, 13, v7
    s_lshl_b32 s{sTmp}, s{sS}, 8
    s_add_u32 s{sTmp}, s{sTmp}, s{sGrp}
    s_add_u32 s{sA}, s{sTmp}, {R_YG}
    s_mov_b32 s{sCnt}, {SPIN}
    L_pollg2:
    s_sleep 8
    s_mov_b32 s{sTmp}, s{sA}
    ''')
    for j in range(4):
        A(f'buffer_load_dwordx4 {v4(vWD+4*j)}, v6, {srd(rWS)}, s{sTmp} offen sc1')
        if j < 3: A(f's_add_u32 s{sTmp}, s{sTmp}, {4*REC}')
    A('s_waitcnt vmcnt(0)')
    check_tag([vWD + 4 * j for j in range(4)], vT + 1, 'L_pollg2')
    for j in range(1, 4):
        for k in range(4): A(f'v_add_f32 v{vWD+k}, v{vWD+k}, v{vWD+4*j+k}')
    allredrows('v_add_f32', range(vWD, vWD + 4), range(vWD + 4, vWD + 8))
    tag4(vWD)
    A(f'''
    s_add_u32 s{sTmp}, s{sRec}, {R_Y2+256}
    s_mov_b64 exec, 0xffff
    buffer_store_dwordx4 {v4(vWD)}, v7, {srd(rWS)}, s{sTmp} offen sc1
    s_mov_b64 exec, -1
    L_nog2:
    v_and_b32 v6, 15, v{vL}
    v_lshlrev_b32 v6, 3, v6
    s_lshl_b32 s{sTmp}, s{sS}, 7
    buffer_load_dwordx2 {v2(vQ)}, v6, {srd(rX)}, s{sTmp} offen
    ''')
    mksrd(rW, sWO, 4096*1152)
    A(f'''
    v_mul_u32_u24 v6, 1152, v1
    v_lshl_add_u32 v6, v2, 4, v6
    s_lshl_b32 s{sTmp}, s{sHK}, 2
    s_add_u32 s{sTmp}, s{sTmp}, s{sWave}
    s_mul_i32 s{sTmp}, s{sTmp}, {64*1152}
    s_lshl_b32 s{sTmp2}, s{sS}, 7
    s_add_u32 s{sTmp}, s{sTmp}, s{sTmp2}
    ''')
    stamp(5)
    if late: A('s_barrier')
    for i in range(8):
        A(f'buffer_load_dwordx4 {v4(vWO+4*i)}, v6, {srd(rW)}, s{sTmp} offen {wflag}')
        if i < 7: A(f's_add_u32 s{sTmp}, s{sTmp}, 9216')
    A(f'''
    v_lshlrev_b32 v6, 13, v2
    v_lshl_add_u32 v7, v1, 4, v6
    s_lshl_b32 s{sTmp}, s{sWave}, 8
    s_add_u32 s{sTmp}, s{sTmp}, s{sGrp}
    s_add_u32 s{sTmp2}, s{sTmp}, {8*REC}
    s_lshr_b32 s{sA}, s{sWave}, 1
    s_lshl_b32 s{sA}, s{sA}, 4
    s_add_u32 s{sA}, s{sA}, s{sGrp}
    s_add_u32 s{sB}, s{sA}, {8*REC}
    s_mov_b32 s{sCnt}, {SPIN}
    s_barrier
    s_setprio 3
    L_pollo:
    buffer_load_dwordx4 {v4(vP+16)}, v6, {srd(rWS)}, s{sA} offen offset:{R_ML} sc1
    buffer_load_dwordx4 {v4(vP+20)}, v6, {srd(rWS)}, s{sB} offen offset:{R_ML} sc1
    buffer_load_dwordx4 {v4(vP)}, v7, {srd(rWS)}, s{sTmp} offen offset:{R_O} sc1
    buffer_load_dwordx4 {v4(vP+4)}, v7, {srd(rWS)}, s{sTmp} offen offset:{R_O+128} sc1
    buffer_load_dwordx4 {v4(vP+8)}, v7, {srd(rWS)}, s{sTmp2} offen offset:{R_O} sc1
    buffer_load_dwordx4 {v4(vP+12)}, v7, {srd(rWS)}, s{sTmp2} offen offset:{R_O+128} sc1
    s_waitcnt vmcnt(0)
    ''')
    check_tag([vP + 4 * k for k in range(6)], vT + 1, 'L_pollo')
    stamp(6)
    mA, lA, mB, lB = vP + 16, vP + 17, vP + 20, vP + 21
    A(f'v_max_f32 v{vT}, v{mA}, v{mB}')
    allred8('v_max_f32', [vT])
    A(f'''
    v_sub_f32 v{mA}, v{mA}, v{vT}
    v_sub_f32 v{mB}, v{mB}, v{vT}
    v_exp_f32 v{mA}, v{mA}
    v_exp_f32 v{mB}, v{mB}
    v_mul_f32 v{lA}, v{mA}, v{lA}
    v_fmac_f32 v{lA}, v{mB}, v{lB}
    ''')
    for k in range(8): A(f'v_mul_f32 v{vP+k}, v{mA}, v{vP+k}')
    for k in range(8): A(f'v_fmac_f32 v{vP+k}, v{mB}, v{vP+8+k}')
    allred8('v_add_f32', [lA] + list(range(vP, vP + 8)))
    A(f'v_rcp_f32 v{lA}, v{lA}')
    for k in range(8): A(f'v_mul_f32 v{vP+k}, v{lA}, v{vP+k}')
    for k in range(8): A(f'v_cvt_pk_bf16_f32 v{vP+k}, v{vP+k}, v{vP+k}')
    for k in range(8):
        bb = vB if k % 2 == 0 else vB2
        diag(bb, vP + k)
        A(f'v_mfma_f32_16x16x32_bf16 {v4(vD)}, {v4(bb)}, {v4(vWO+4*k)}, {"0" if k == 0 else v4(vD)}')
    A(f'''
    v_lshrrev_b32 v6, 5, v{vL}
    v_lshl_add_u32 v6, v6, 8, v3
    s_lshl_b32 s{sTmp}, s{sWave}, 9
    v_add_u32 v6, s{sTmp}, v6
    s_mov_b32 exec_lo, 0x00ff00ff
    s_mov_b32 exec_hi, 0xff00ff00
    ds_write_b128 v6, {v4(vD)} offset:{L_Y}
    s_mov_b64 exec, -1
    s_waitcnt lgkmcnt(0)
    s_barrier
    s_cmp_eq_u32 s{sWave}, 0
    s_cbranch_scc0 L_end
    v_lshlrev_b32 v6, 4, v{vL}
    ds_read_b128 {v4(vO)}, v6 offset:{L_Y}
    ds_read_b128 {v4(vS)}, v6 offset:{L_Y+1024}
    v_and_b32 v7, 15, v{vL}
    v_lshlrev_b32 v7, 4, v7
    s_add_u32 s{sTmp}, s{sRec}, {R_Y2}
    s_waitcnt lgkmcnt(0)
    ''')
    for k in range(4): A(f'v_add_f32 v{vO+k}, v{vO+k}, v{vS+k}')
    allredrows('v_add_f32', range(vO, vO + 4), range(vS, vS + 4))
    tag4(vO)
    A(f'''
    s_mov_b64 exec, 0xffff
    buffer_store_dwordx4 {v4(vO)}, v7, {srd(rWS)}, s{sTmp} offen sc1
    s_mov_b64 exec, -1
    s_cmp_eq_u32 s{sHK}, s{sS}
    s_cbranch_scc0 L_fin0
    ''')
    A(f'''
    v_lshrrev_b32 v6, 4, v{vL}
    v_lshl_add_u32 v6, v6, 17, v7
    s_lshl_b32 s{sA}, s{sS}, 13
    s_add_u32 s{sA}, s{sA}, {R_Y2}
    s_mov_b32 s{sCnt}, {SPIN}
    ''')
    mksrd(rW, sOUT, 1152)
    mksrd(rX, sWS, 4)
    A(f'L_polly:\ns_mov_b32 s{sTmp}, s{sA}')
    for j in range(4):
        A(f'buffer_load_dwordx4 {v4(vWD+4*j)}, v6, {srd(rWS)}, s{sTmp} offen sc1')
        A(f'buffer_load_dwordx4 {v4(vWD+16+4*j)}, v6, {srd(rWS)}, s{sTmp} offen offset:256 sc1')
        if j < 3: A(f's_add_u32 s{sTmp}, s{sTmp}, {64*REC}')
    A('s_waitcnt vmcnt(0)')
    check_tag([vWD + 4 * j for j in range(8)], vT + 1, 'L_polly')
    for j in range(1, 4):
        for k in range(4): A(f'v_add_f32 v{vWD+k}, v{vWD+k}, v{vWD+4*j+k}')
        for k in range(4): A(f'v_add_f32 v{vWD+16+k}, v{vWD+16+k}, v{vWD+16+4*j+k}')
    rs = list(range(vWD, vWD + 4)) + list(range(vWD + 16, vWD + 20))
    allredrows('v_add_f32', rs, list(range(vWD + 4, vWD + 12)))
    for r in rs: bf16r(r, r)
    A(f'''
    v_lshlrev_b32 v{vS}, 16, v{vQ}
    v_and_b32 v{vS+1}, 0xffff0000, v{vQ}
    v_lshlrev_b32 v{vS+2}, 16, v{vQ+1}
    v_and_b32 v{vS+3}, 0xffff0000, v{vQ+1}
    ''')
    for k in range(4): A(f'v_add_f32 v{vS+k}, v{vS+k}, v{vWD+k}')
    for k in range(4): bf16r(vS + k, vS + k)
    for k in range(4): A(f'v_add_f32 v{vS+k}, v{vS+k}, v{vWD+16+k}')
    A(f'''
    v_cvt_pk_bf16_f32 v{vS}, v{vS}, v{vS+1}
    v_cvt_pk_bf16_f32 v{vS+1}, v{vS+2}, v{vS+3}
    v_lshrrev_b32 v7, 1, v7
    s_lshl_b32 s{sTmp}, s{sS}, 7
    s_mov_b64 exec, 0xffff
    buffer_store_dwordx2 {v2(vS)}, v7, {srd(rW)}, s{sTmp} offen
    s_cmp_eq_u32 s2, 0
    s_cbranch_scc0 L_fin0
    s_mov_b64 exec, 1
    v_mov_b32 v1, s{sTag}
    buffer_store_dword v1, v7, {srd(rX)}, 0 offen sc1
    L_fin0:
    ''')
    if ts:
        A(f's_cmp_eq_u32 s{sWave}, 0\ns_cbranch_scc0 L_end')
        dump_ts(0)
    A('L_end:\ns_endpgm')
    body, pads = fix('\n'.join(o))
    src = HEADER + f'''; Generated by my own generator script (hand-designed instruction stream); D={D}
; @launch grid=(256,1,1) block=(512,1,1) lds={LDS_BYTES}
.amdgcn_target "amdgcn-amd-amdhsa--gfx950"
.text
.globl {NAME}
.p2align 8
.type {NAME},@function
{body}
.section .rodata,"a"
.p2align 6
.amdhsa_kernel {NAME}
  .amdhsa_next_free_vgpr {NV}
  .amdhsa_next_free_sgpr 96
  .amdhsa_accum_offset {(NV+3)//4*4}
  .amdhsa_group_segment_fixed_size 0
  .amdhsa_kernarg_size 96
  .amdhsa_user_sgpr_count 2
  .amdhsa_user_sgpr_kernarg_segment_ptr 1
  .amdhsa_system_sgpr_workgroup_id_x 1
  .amdhsa_float_denorm_mode_32 3
.end_amdhsa_kernel
'''
    return src, NV, pads

if __name__ == '__main__':
    import argparse, ast
    ap = argparse.ArgumentParser()
    ap.add_argument('-o', default='parallel_sum__gqa_block_cached__glu_gated_glu__decode.s')
    ap.add_argument('kw', nargs='*')
    a = ap.parse_args()
    kw = {}
    for x in a.kw:
        k, v = x.split('=', 1)
        try: kw[k] = ast.literal_eval(v)
        except Exception: kw[k] = v
    src, nv, pads = gen(**kw)
    open(a.o, 'w').write(src)
    print('vgprs', nv, 'pad states', pads, 'lines', src.count('\n'))
```

```python
import sys
from hazard import fix

NAME = 'parallel_sum__gqa_block_cached__glu_gated_glu__decode_kernel'
HEADER = open('parallel_sum__gqa_block_cached__glu_gated_glu__decode.s.ref').read().split('; Override launch')[0]

REC = 8192
WS_REC = 65536
R_Q, R_GU, R_O, R_ML, R_YG, R_Y2 = 0, 512, 2816, 3840, 4096, 6400
RING = 8
L_SC = 4 * RING * 4096
L_Q = L_SC + 16384
L_O = L_Q + 512
L_ML = L_O + 4096
L_Y = L_ML + 128
LDS_BYTES = L_Y + 2048
NT = 64
LOG2E = 0x3FB8AA3B
SCALE = 0x3DB504F3
INV576 = 0x3AE38E39
EPS = 0x3727C5AC
SPIN = 1 << 18
OOB = 0x7ff00000

def gen(W=5, ts=False, kvflag='nt', wflag='nt', qsleep=0, nomid=False, nopro=False, late=True, exp='', guprio=2, gusleep=16,
        bits='r0 r1 g0 g1 j0 j1 t0 t1 t2 t3 t4 t5 s0 s1 s2 s3', WP=None):
    if WP is None: WP = W
    o = []
    def A(s):
        for l in s.strip('\n').split('\n'):
            l = l.strip()
            if not l: continue
            o.append(l if l.endswith(':') else '  ' + l)
    uid = [0]
    def lab(p):
        uid[0] += 1
        return f'L_{p}_{uid[0]}'

    sX, sK, sV, sWQ, sWO, sGATE, sUP, sDOWN, sOUT, sDBG, sWS = 4, 6, 8, 10, 12, 16, 18, 20, 22, 24, 26
    rK, rV, rX, rW, rWS = 28, 32, 36, 40, 44
    rW2 = rK
    sTag = 48
    sWave, sHK, sS = 3, 52, 53
    sT, sRnd, sTmp, sTmp2, sCnt, sRec, sGrp = 54, 55, 56, 57, 58, 59, 60
    sHI, sL2E, sSC = 62, 64, 65
    sA, sB = 66, 67
    sTS = 70
    def srd(r): return f's[{r}:{r+3}]'
    vL, vFF = 0, 50
    vM = 8; vQ = 12; vO = 28; vS = 32; vB = 36; vB2 = 40
    vm, vmL, vl = 44, 45, 46
    vT = 47
    vD = 60; vD1 = 56
    vW = 64
    NV = 256
    def v4(r): return f'v[{r}:{r+3}]'
    def v2(r): return f'v[{r}:{r+1}]'

    def stamp(i):
        if ts: A(f's_memrealtime s[{sTS+2*i}:{sTS+2*i+1}]')
    def dump_ts(slot):
        if not ts: return
        A('s_mov_b64 exec, -1')
        stamp(7)
        A(f's_waitcnt lgkmcnt(0)')
        A(f's_add_u32 s28, s{sWS}, 0x20000000\ns_addc_u32 s29, s{sWS+1}, 0\ns_mov_b32 s30, 0x100000\ns_mov_b32 s31, 0x20000')
        A(f's_lshl_b32 s{sTmp}, s2, 8\ns_add_u32 s{sTmp}, s{sTmp}, {slot*64}\nv_mov_b32 v1, 0')
        for i in range(8):
            A(f'v_mov_b32 v2, s{sTS+2*i}\nbuffer_store_dword v2, v1, s[28:31], s{sTmp} offen offset:{4*i}')

    def allred16(op, r):
        for m in ('quad_perm:[1,0,3,2]', 'quad_perm:[2,3,0,1]', 'row_half_mirror', 'row_mirror'):
            A(f'{op}_dpp v{r}, v{r}, v{r} {m} row_mask:0xf bank_mask:0xf')
    def allred8(op, rs):
        for m in ('quad_perm:[1,0,3,2]', 'quad_perm:[2,3,0,1]', 'row_half_mirror'):
            for r in rs:
                A(f'{op}_dpp v{r}, v{r}, v{r} {m} row_mask:0xf bank_mask:0xf')
    def allredrows(op, rs, ts_):
        for sw in ('v_permlane16_swap_b32', 'v_permlane32_swap_b32'):
            for r, t in zip(rs, ts_): A(f'v_mov_b32 v{t}, v{r}')
            for r, t in zip(rs, ts_): A(f'{sw} v{r}, v{t}')
            for r, t in zip(rs, ts_): A(f'{op} v{r}, v{r}, v{t}')
    def bf16r(dst, src):
        A(f'v_cvt_pk_bf16_f32 v{dst}, v{src}, v{src}\nv_lshlrev_b32 v{dst}, 16, v{dst}')
    def diag(dst, src):
        for w in range(4): A(f'v_and_b32 v{dst+w}, v{src}, v{vM+w}')
    def tag4(r):
        for k in range(4): A(f'v_bfi_b32 v{r+k}, v{vFF}, s{sTag+k}, v{r+k}')
    def check_tag(grans, t, retry):
        first = True
        for g in grans:
            for k in range(4):
                if first: A(f'v_xor_b32 v{t}, s{sTag+k}, v{g+k}'); first = False
                else: A(f'v_bitop3_b32 v{t}, v{t}, v{g+k}, s{sTag+k} bitop3:0xf6')
        done = lab('got')
        A(f'v_and_b32 v{t}, 0xff, v{t}\nv_cmp_ne_u32 vcc, 0, v{t}\ns_cbranch_vccz {done}')
        A(f's_sub_u32 s{sCnt}, s{sCnt}, 1\ns_cbranch_scc0 {retry}\n{done}:')
    def diagadd(dst):
        for k in range(4): A(f'v_mov_b32 v{vD1+k}, v{vD+k}')
        for k in range(4): A(f'v_permlane32_swap_b32 v{vD+k}, v{vD1+k}')
        for k in range(4): A(f'v_add_f32_dpp v{dst+k}, v{vD1+k}, v{vD+k} row_ror:8 row_mask:0xf bank_mask:0xf')
    def mksrd(r, ptr, size):
        A(f's_mov_b32 s{r}, s{ptr}\ns_mov_b32 s{r+1}, s{ptr+1}\ns_mov_b32 s{r+2}, {size}\ns_mov_b32 s{r+3}, 0x20000')

    toks = bits.split()
    pos = {t: 8 + i for i, t in enumerate(toks)}
    assert len(pos) == 16 and [pos[t] for t in ('r0', 'r1', 'g0', 'g1')] == [8, 9, 10, 11]
    tp = [pos['t%d' % b] for b in range(6)]
    assert tp == list(range(tp[0], tp[0] + 6))
    sFix, sIss, sCon, sRing = 68, 69, 32, 33
    vDo = 64
    vLin, vAK, vAV, vSc = 68, 69, 70, 71
    vRd = 72
    vKA = 76
    vBB = 92
    def issue(w):
        A(f's_add_u32 m0, s{sRing}, s{sIss}\ns_add_u32 s{sIss}, s{sIss}, 4096\ns_and_b32 s{sIss}, s{sIss}, {RING*4096-1}')
        for j in range(4):
            A(f's_waitcnt vmcnt({w-1})')
            A(f'buffer_load_dwordx4 v{vDo+j}, {srd(rK)}, s{sT} offen offset:{1024*j} {kvflag} lds')
        A(f's_add_u32 s{sT}, s{sT}, {1 << tp[0]}')
    def masks():
        A(f'''
        v_and_b32 v{vT}, 1, v{vL}
        v_lshlrev_b32 v{vT}, 4, v{vT}
        v_mov_b32 v{vT+1}, 0xffff
        v_lshlrev_b32 v{vT}, v{vT}, v{vT+1}
        v_bfe_u32 v{vT+1}, v{vL}, 1, 2
        ''')
        for w in range(4):
            A(f'v_cmp_eq_u32 vcc, {w}, v{vT+1}\nv_cndmask_b32 v{vM+w}, 0, v{vT}, vcc')
    def common_setup():
        A(f'''
        s_lshl_b32 s{sRec}, s2, 13
        s_lshl_b32 s{sGrp}, s{sHK}, 17
        s_mov_b32 s{sHI}, 0
        s_mov_b32 s{sHI+1}, -1
        s_mov_b32 s{sL2E}, {LOG2E:#x}
        s_mov_b32 s{sSC}, {SCALE:#x}
        s_add_u32 s{rWS}, s{sWS}, {WS_REC}
        s_addc_u32 s{rWS+1}, s{sWS+1}, 0
        s_mov_b32 s{rWS+2}, {256*REC}
        s_mov_b32 s{rWS+3}, 0x20000
        ''')
    def kv_setup():
        A(f'''
        v_and_b32 v1, 15, v{vL}
        v_lshrrev_b32 v2, 4, v{vL}
        v_xor_b32 v3, v1, v2
        v_lshlrev_b32 v3, 4, v3
        v_lshl_add_u32 v{vDo}, v2, 8, v3
        v_xor_b32 v{vDo+1}, 64, v{vDo}
        v_xor_b32 v{vDo+2}, 0x80, v{vDo}
        v_xor_b32 v{vDo+3}, 0xc0, v{vDo}
        ''')
        first = True
        for nm, reg, n in (('j', sWave, 2), ('s', sS, 4)):
            b_ = 0
            while b_ < n:
                e_ = b_
                while e_ + 1 < n and pos[f'{nm}{e_+1}'] == pos[f'{nm}{e_}'] + 1: e_ += 1
                A(f's_bfe_u32 s{sTmp}, s{reg}, {b_ | ((e_-b_+1) << 16):#x}')
                if first: A(f's_lshl_b32 s{sT}, s{sTmp}, {pos[f"{nm}{b_}"]}'); first = False
                else: A(f's_lshl_b32 s{sTmp}, s{sTmp}, {pos[f"{nm}{b_}"]}\ns_or_b32 s{sT}, s{sT}, s{sTmp}')
                b_ = e_ + 1
        A(f'''
        s_mov_b32 s{sFix}, s{sT}
        s_and_b32 s{sRing}, s{sWave}, 3
        s_mul_i32 s{sRing}, s{sRing}, {RING*4096}
        s_mov_b32 s{sIss}, 0
        s_mov_b32 s{sCon}, 0
        s_lshl_b32 s{sTmp2}, s{sHK}, 24
        s_mov_b32 s{rK+2}, 0x1000000
        s_mov_b32 s{rK+3}, 0x20000
        s_waitcnt lgkmcnt(0)
        s_add_u32 s{rK}, s{sK}, s{sTmp2}
        s_addc_u32 s{rK+1}, s{sK+1}, 0
        s_add_u32 s{sV}, s{sV}, s{sTmp2}
        s_addc_u32 s{sV+1}, s{sV+1}, 0
        ''')
    def tag_setup():
        A(f'''
        s_waitcnt lgkmcnt(0)
        s_add_u32 s{sTag}, s{sTag}, 0x04030201
        s_lshr_b32 s{sTag+1}, s{sTag}, 8
        s_lshr_b32 s{sTag+2}, s{sTag}, 16
        s_lshr_b32 s{sTag+3}, s{sTag}, 24
        ''')
    vX4, vX1 = 52, 51
    a, b, c_ = 38, 39, 40
    def ln_stats():
        f = 28
        for k in range(4):
            A(f'v_lshlrev_b32 v{f+2*k}, 16, v{vX4+k}\nv_and_b32 v{f+2*k+1}, 0xffff0000, v{vX4+k}')
        A(f'v_lshlrev_b32 v{f+8}, 16, v{vX1}\nv_and_b32 v{f+9}, 0xffff0000, v{vX1}')
        A(f'v_add_f32 v{a}, v{f}, v{f+1}\nv_add_f32 v{b}, v{f+2}, v{f+3}')
        for k in (4, 6, 8): A(f'v_add_f32 v{a}, v{a}, v{f+k}\nv_add_f32 v{b}, v{b}, v{f+k+1}')
        A(f'v_add_f32 v{a}, v{a}, v{b}')
        allred16('v_add_f32', a); allredrows('v_add_f32', [a], [b])
        A(f'v_mul_f32 v{a}, {INV576:#x}, v{a}')
        for k in range(10): A(f'v_sub_f32 v{f+k}, v{f+k}, v{a}')
        A(f'v_cndmask_b32 v{f+8}, v{f+8}, 0, s[{sHI}:{sHI+1}]\nv_cndmask_b32 v{f+9}, v{f+9}, 0, s[{sHI}:{sHI+1}]')
        A(f'v_mul_f32 v{b}, v{f}, v{f}\nv_mul_f32 v{c_}, v{f+1}, v{f+1}')
        for k in (2, 4, 6, 8): A(f'v_fmac_f32 v{b}, v{f+k}, v{f+k}\nv_fmac_f32 v{c_}, v{f+k+1}, v{f+k+1}')
        A(f'v_add_f32 v{b}, v{b}, v{c_}')
        allred16('v_add_f32', b); allredrows('v_add_f32', [b], [c_])
        A(f'v_mul_f32 v{b}, {INV576:#x}, v{b}')
        bf16r(a, a); bf16r(b, b)
        A(f'v_add_f32 v{b}, {EPS:#x}, v{b}'); bf16r(b, b)
        A(f'v_sqrt_f32 v{b}, v{b}'); bf16r(b, b)
        A(f'v_rcp_f32 v{b}, v{b}')
    def normalize(rs):
        for r in rs: A(f'v_sub_f32 v{r}, v{r}, v{a}')
        for r in rs: A(f'v_cvt_pk_bf16_f32 v{r}, v{r}, v{r}')
        for r in rs: A(f'v_lshlrev_b32 v{r}, 16, v{r}')
        for r in rs: A(f'v_mul_f32 v{r}, v{r}, v{b}')
        for r in rs: A(f'v_cvt_pk_bf16_f32 v{r}, v{r}, v{r}')
    def xstat_loads():
        A(f'''
        buffer_load_dwordx4 {v4(vX4)}, v7, {srd(rX)}, 0 offen
        buffer_load_dword v{vX1}, v6, {srd(rX)}, 0 offen offset:1024
        ''')

    A(f'{NAME}:')
    A(f'''
    s_cmp_ge_u32 s2, 256
    s_cbranch_scc1 L_end
    s_load_dwordx16 s[4:19], s[0:1], 0
    s_load_dwordx8 s[20:27], s[0:1], 64
    ''')
    if ts:
        for i in range(16): A(f's_mov_b32 s{sTS+i}, 0')
    stamp(0)
    A(f'''
    v_lshrrev_b32 v1, 6, v0
    v_and_b32 v{vL}, 63, v0
    v_readfirstlane_b32 s{sWave}, v1
    s_lshr_b32 s{sHK}, s2, 4
    s_and_b32 s{sS}, s2, 15
    v_lshlrev_b32 v7, 4, v{vL}
    v_lshlrev_b32 v6, 2, v{vL}
    s_mov_b32 s{rX+2}, 1152
    s_mov_b32 s{rX+3}, 0x20000
    s_mov_b32 s{rW+3}, 0x20000
    s_cmp_ge_u32 s{sWave}, 4
    s_cbranch_scc1 L_stream
    s_cmp_eq_u32 s{sWave}, 0
    s_cbranch_scc0 L_notw0
    ''')
    if nopro: o[-2:] = ['  s_branch L_end']
    vXP = 64
    vXD0 = 74
    vWQ = 100
    A(f'''
    s_setprio 3
    v_lshrrev_b32 v1, 3, v{vL}
    v_and_b32 v2, 7, v{vL}
    s_lshr_b32 s{sTmp}, s{sS}, 2
    s_mul_i32 s{sTmp}, s{sTmp}, 144
    v_mad_u32_u24 v1, v1, 18, s{sTmp}
    v_lshlrev_b32 v3, 13, v1
    v_lshl_add_u32 v3, v2, 4, v3
    v_lshlrev_b32 v1, 1, v1
    s_and_b32 s{sTmp}, s{sS}, 3
    s_lshl_b32 s{sTmp}, s{sTmp}, 7
    s_lshl_b32 s{sTmp2}, s{sHK}, 9
    s_add_u32 s{sTmp}, s{sTmp}, s{sTmp2}
    s_mov_b32 s{rW+2}, {576*8192}
    s_waitcnt lgkmcnt(0)
    s_mov_b32 s{rX}, s{sX}
    s_mov_b32 s{rX+1}, s{sX+1}
    s_mov_b32 s{rW}, s{sWQ}
    s_mov_b32 s{rW+1}, s{sWQ+1}
    s_load_dword s{sTag}, s[{sWS}:{sWS+1}], 0
    ''')
    xstat_loads()
    A(f'''
    buffer_load_dwordx4 {v4(vXP)}, v1, {srd(rX)}, 0 offen
    buffer_load_dwordx4 {v4(vXP+4)}, v1, {srd(rX)}, 0 offen offset:16
    buffer_load_dword v{vXP+8}, v1, {srd(rX)}, 0 offen offset:32
    ''')
    for j in range(18):
        A(f'buffer_load_dwordx4 {v4(vWQ+4*j)}, v3, {srd(rW)}, s{sTmp} offen {wflag}')
        if j < 17: A(f's_add_u32 s{sTmp}, s{sTmp}, 8192')
    common_setup(); masks()
    A(f'''
    v_mov_b32 v{vFF}, 0xff
    v_bfe_u32 v3, v{vL}, 4, 1
    v_lshlrev_b32 v3, 5, v3
    v_lshl_add_u32 v3, v2, 6, v3
    v_lshrrev_b32 v2, 5, v{vL}
    v_lshl_add_u32 v3, v2, 4, v3
    v_lshrrev_b32 v2, 4, v{vL}
    v_and_b32 v1, 15, v{vL}
    v_lshlrev_b32 v1, 5, v1
    v_lshl_add_u32 v1, v2, 13, v1
    v_lshlrev_b32 v2, 3, v{vL}
    v_add_u32 v2, {L_Q}, v2
    ''')
    tag_setup()
    A('s_waitcnt vmcnt(18)')
    stamp(1)
    ln_stats()
    for i in range(9):
        A(f'v_lshlrev_b32 v{vXD0+2*i}, 16, v{vXP+i}\nv_and_b32 v{vXD0+2*i+1}, 0xffff0000, v{vXP+i}')
    normalize(range(vXD0, vXD0 + 18))
    for j in range(18):
        bb = vB if j % 2 == 0 else vB2
        diag(bb, vXD0 + j)
        if j % 6 == 0: A(f's_waitcnt vmcnt({12-j})')
        A(f'v_mfma_f32_16x16x32_bf16 {v4(vD)}, {v4(bb)}, {v4(vWQ+4*j)}, {"0" if j == 0 else v4(vD)}')
    stamp(2)
    if 'noqx' in exp: A('s_branch L_gotq')
    diagadd(vO)
    A(f'''
    v_cndmask_b32 v{vS}, v{vO}, v{vO+2}, s[{sHI}:{sHI+1}]
    v_mov_b32 v{vS+1}, s{sTag}
    v_cndmask_b32 v{vS+2}, v{vO+1}, v{vO+3}, s[{sHI}:{sHI+1}]
    v_mov_b32 v{vS+3}, s{sTag}
    s_mov_b32 exec_lo, 0x00ff00ff
    s_mov_b32 exec_hi, 0x00ff00ff
    buffer_store_dwordx4 {v4(vS)}, v3, {srd(rWS)}, s{sRec} offen sc1
    s_mov_b64 exec, -1
    s_add_u32 s{sA}, s{sGrp}, {4*REC}
    s_add_u32 s{sB}, s{sGrp}, {8*REC}
    s_add_u32 s{sTmp}, s{sGrp}, {12*REC}
    s_mov_b32 s{sCnt}, {SPIN}
    ''')
    stamp(3)
    A('L_pollq:')
    if qsleep: A(f's_sleep {qsleep}')
    for p, so in enumerate((sGrp, sA, sB, sTmp)):
        A(f'buffer_load_dwordx4 {v4(vW+8*p)}, v1, {srd(rWS)}, s{so} offen sc1')
        A(f'buffer_load_dwordx4 {v4(vW+8*p+4)}, v1, {srd(rWS)}, s{so} offen offset:16 sc1')
    A('s_waitcnt vmcnt(0)')
    A(f'v_xor_b32 v{vT}, s{sTag}, v{vW+1}')
    for k in range(3, 32, 2): A(f'v_bitop3_b32 v{vT}, v{vT}, v{vW+k}, s{sTag} bitop3:0xf6')
    A(f'''
    v_cmp_ne_u32 vcc, 0, v{vT}
    s_cbranch_vccz L_gotq
    s_sub_u32 s{sCnt}, s{sCnt}, 1
    s_cbranch_scc0 L_pollq
    L_gotq:
    ''')
    stamp(4)
    for k in range(0, 8, 2): A(f'v_add_f32 v{vW+k}, v{vW+k}, v{vW+8+k}')
    for k in range(0, 8, 2): A(f'v_add_f32 v{vW+16+k}, v{vW+16+k}, v{vW+24+k}')
    for k in range(0, 8, 2): A(f'v_add_f32 v{vW+k}, v{vW+k}, v{vW+16+k}')
    A(f'''
    v_cvt_pk_bf16_f32 v{vS}, v{vW}, v{vW+2}
    v_cvt_pk_bf16_f32 v{vS+1}, v{vW+4}, v{vW+6}
    ds_write_b64 v2, {v2(vS)}
    s_waitcnt lgkmcnt(0)
    s_barrier
    s_branch L_g1done
    ''')
    vXD = vQ
    A(f'''
    L_notw0:
    {'s_branch L_end' if 'nogu' in exp.split() else ''}
    s_setprio {guprio}
    v_and_b32 v1, 15, v{vL}
    v_lshrrev_b32 v2, 4, v{vL}
    s_mul_i32 s{sTmp}, s{sS}, 36
    v_add_u32 v2, s{sTmp}, v2
    s_mul_i32 s{sTmp}, s{sHK}, 576
    s_bitcmp1_b32 s{sHK}, 0
    s_cselect_b32 s{sCnt}, 64, 0
    s_cselect_b32 s{sA}, 0, 512
    s_cmp_eq_u32 s{sWave}, 3
    s_cselect_b32 s{sB}, 4, 16
    s_cselect_b32 s{sCnt}, s{sA}, s{sCnt}
    s_cselect_b32 s{sRnd}, 0, 256
    s_movk_i32 s{sT}, 512
    s_cselect_b32 s{sT}, 1152, s{sT}
    s_lshl_b32 s{sA}, s{sCnt}, 1
    s_add_u32 s{sTmp}, s{sTmp}, s{sCnt}
    s_add_u32 s{sTmp2}, s{sTmp}, s{sRnd}
    v_mul_u32_u24 v3, 9216, v2
    v_lshl_add_u32 v3, v1, 4, v3
    v_cmp_gt_u32 vcc, s{sB}, v1
    v_mov_b32 v{vT}, {OOB:#x}
    v_cndmask_b32 v3, v{vT}, v3, vcc
    v_lshlrev_b32 v2, 1, v2
    s_mov_b32 s{rW+2}, {576*9216}
    s_mov_b32 s{rW2+2}, {576*9216}
    s_mov_b32 s{rW2+3}, 0x20000
    s_waitcnt lgkmcnt(0)
    s_mov_b32 s{rX}, s{sX}
    s_mov_b32 s{rX+1}, s{sX+1}
    s_cmp_eq_u32 s{sWave}, 2
    s_cselect_b32 s{rW}, s{sUP}, s{sGATE}
    s_cselect_b32 s{rW+1}, s{sUP+1}, s{sGATE+1}
    s_cselect_b32 s{sCnt}, 1152, 0
    s_add_u32 s{sA}, s{sA}, s{sCnt}
    s_cmp_eq_u32 s{sWave}, 1
    s_cselect_b32 s{rW2}, s{sGATE}, s{sUP}
    s_cselect_b32 s{rW2+1}, s{sGATE+1}, s{sUP+1}
    s_load_dword s{sTag}, s[{sWS}:{sWS+1}], 0
    ''')
    xstat_loads()
    for j in range(9): A(f'buffer_load_ushort v{vXD+j}, v2, {srd(rX)}, 0 offen offset:{8*j}')
    for j in range(9):
        A(f'buffer_load_dwordx4 {v4(vW+8*j)}, v3, {srd(rW)}, s{sTmp} offen {wflag}')
        A(f'buffer_load_dwordx4 {v4(vW+8*j+4)}, v3, {srd(rW2)}, s{sTmp2} offen {wflag}')
        if j < 8: A(f's_add_u32 s{sTmp}, s{sTmp}, {4*9216}\ns_add_u32 s{sTmp2}, s{sTmp2}, {4*9216}')
    common_setup(); masks()
    A(f'''
    v_mov_b32 v{vFF}, 0xff
    s_add_u32 s{sA}, s{sA}, s{sRec}
    v_cmp_gt_u32 vcc, s{sB}, v1
    v_lshlrev_b32 v1, 5, v1
    v_bfe_u32 v2, v{vL}, 4, 1
    v_lshl_add_u32 v1, v2, 4, v1
    v_lshrrev_b32 v2, 5, v{vL}
    v_mad_u32_u24 v1, v2, s{sT}, v1
    v_mov_b32 v2, {OOB:#x}
    v_cndmask_b32 v1, v2, v1, vcc
    ''')
    tag_setup()
    A(f's_waitcnt vmcnt(18)')
    ln_stats()
    for j in range(9): A(f'v_lshlrev_b32 v{vXD+j}, 16, v{vXD+j}')
    normalize(range(vXD, vXD + 9))
    for j in range(9):
        bb = vB if j % 2 == 0 else vB2
        diag(bb, vXD + j)
        if j % 3 == 0: A(f's_waitcnt vmcnt({12-2*j})')
        A(f'v_mfma_f32_16x16x32_bf16 {v4(vD)}, {v4(bb)}, {v4(vW+8*j)}, {"0" if j == 0 else v4(vD)}')
        A(f'v_mfma_f32_16x16x32_bf16 {v4(vD1)}, {v4(bb)}, {v4(vW+8*j+4)}, {"0" if j == 0 else v4(vD1)}')
    for k in range(4): A(f'v_cndmask_b32 v{vD+k}, v{vD+k}, v{vD1+k}, s[{sHI}:{sHI+1}]')
    tag4(vD)
    A(f'''
    {'' if 'nogupub' in exp else f'buffer_store_dwordx4 {v4(vD)}, v1, {srd(rWS)}, s{sA} offen offset:{R_GU} sc1'}
    s_barrier
    s_cmp_eq_u32 s{sWave}, 1
    s_cbranch_scc1 L_g1
    s_branch L_g1done
    L_stream:
    s_setprio 1
    ''')
    kv_setup()
    A(f's_load_dword s{sTag}, s[{sWS}:{sWS+1}], 0\ns_mov_b32 s{sRnd}, {RING}\nL_pre:')
    issue(WP)
    A(f's_sub_u32 s{sRnd}, s{sRnd}, 1\ns_cmp_lg_u32 s{sRnd}, 0\ns_cbranch_scc1 L_pre')
    stamp(1)
    common_setup(); masks()
    A(f'''
    v_mov_b32 v{vFF}, 0xff
    v_lshlrev_b32 v{vLin}, 4, v{vL}
    v_lshl_add_u32 v{vAK}, v1, 8, v3
    v_add_u32 v{vAK}, s{sRing}, v{vAK}
    v_lshlrev_b32 v{vAV}, 4, v1
    v_lshl_add_u32 v{vAV}, v2, 10, v{vAV}
    v_add_u32 v{vAV}, s{sRing}, v{vAV}
    v_lshrrev_b32 v{vSc}, 3, v{vL}
    v_lshlrev_b32 v{vSc}, 3, v{vSc}
    s_and_b32 s{sTmp}, s{sWave}, 3
    s_lshl_b32 s{sTmp}, s{sTmp}, 12
    s_add_u32 s{sTmp}, s{sTmp}, {L_SC}
    v_add_u32 v{vSc}, s{sTmp}, v{vSc}
    ''')
    tag_setup()
    A('s_barrier')
    t0, t1 = 48, 49
    A(f'''
    v_bfe_u32 v1, v{vL}, 3, 1
    v_lshlrev_b32 v1, 8, v1
    v_lshl_add_u32 v1, v2, 4, v1
    v_add_u32 v1, {L_Q}, v1
    ''')
    for j in range(4): A(f'ds_read_b128 {v4(vQ+4*j)}, v1 offset:{64*j}')
    stamp(3)
    for k in range(4): A(f'v_mov_b32 v{vO+k}, 0')
    A(f'''
    v_mov_b32 v{vm}, 0xf149f2ca
    v_mov_b32 v{vl}, 0
    s_mov_b32 s{sRnd}, 0
    L_kloop:
    v_add_u32 v{vRd}, s{sCon}, v{vAK}
    v_xor_b32 v{vRd+1}, 64, v{vRd}
    v_xor_b32 v{vRd+2}, 0x80, v{vRd}
    v_xor_b32 v{vRd+3}, 0xc0, v{vRd}
    s_add_u32 s{sCon}, s{sCon}, 4096
    s_and_b32 s{sCon}, s{sCon}, {RING*4096-1}
    s_waitcnt vmcnt(4)
    ''')
    for j in range(4): A(f'ds_read_b128 {v4(vKA+4*j)}, v{vRd+j}')
    A(f'''
    s_cmp_lt_u32 s{sRnd}, {2*(RING-2)}
    s_cselect_b32 s{sTmp}, s{sRnd}, 1
    s_bitcmp1_b32 s{sTmp}, 0
    s_cbranch_scc0 L_knoiss
    ''')
    issue(W)
    A(f'''
    s_cmp_eq_u32 s{sRnd}, {NT-3}
    s_cbranch_scc1 L_kswitch
    L_knoiss:
    s_waitcnt lgkmcnt(0)
    ''')
    for j in range(4):
        A(f'v_mfma_f32_16x16x32_bf16 {v4(vS)}, {v4(vKA+4*j)}, {v4(vQ+4*j)}, {"0" if j == 0 else v4(vS)}')
    def pack():
        A(f'v_cvt_pk_bf16_f32 v{t0}, v{vS}, v{vS+1}\nv_cvt_pk_bf16_f32 v{t1}, v{vS+2}, v{vS+3}')
    def unpack():
        A(f'''
        v_lshlrev_b32 v{vS}, 16, v{t0}
        v_and_b32 v{vS+1}, 0xffff0000, v{t0}
        v_lshlrev_b32 v{vS+2}, 16, v{t1}
        v_and_b32 v{vS+3}, 0xffff0000, v{t1}
        ''')
    A(f's_add_u32 s{sRnd}, s{sRnd}, 1\ns_cmp_lt_u32 s{sRnd}, {NT}')
    pack(); unpack()
    for k in range(4): A(f'v_mul_f32 v{vS+k}, s{sSC}, v{vS+k}')
    pack()
    A(f'ds_write_b64 v{vSc}, {v2(t0)}')
    unpack()
    A(f'''
    v_add_u32 v{vSc}, 64, v{vSc}
    v_max3_f32 v{vm}, v{vm}, v{vS}, v{vS+1}
    v_max3_f32 v{vm}, v{vm}, v{vS+2}, v{vS+3}
    s_cbranch_scc1 L_kloop
    ''')
    stamp(4)
    allredrows('v_max_f32', [vm], [t0])
    A(f'''
    v_mul_f32 v{vmL}, s{sL2E}, v{vm}
    v_subrev_u32 v{vSc}, {64*NT}, v{vSc}
    s_mov_b32 s{sRnd}, 0
    s_waitcnt lgkmcnt(0)
    L_vloop:
    ds_read_b64 {v2(t0)}, v{vSc}
    v_add_u32 v{vRd}, s{sCon}, v{vAV}
    v_add_u32 v{vSc}, 64, v{vSc}
    s_add_u32 s{sCon}, s{sCon}, 4096
    s_and_b32 s{sCon}, s{sCon}, {RING*4096-1}
    s_waitcnt lgkmcnt(0)
    ''')
    unpack()
    for k in range(4): A(f'v_fma_f32 v{vS+k}, v{vS+k}, s{sL2E}, -v{vmL}')
    for k in range(4): A(f'v_exp_f32 v{vS+k}, v{vS+k}')
    A(f'v_add_f32 v{t0}, v{vS}, v{vS+1}\nv_add_f32 v{t1}, v{vS+2}, v{vS+3}')
    for k in range(4): A(f'v_cvt_pk_bf16_f32 v{vS+k}, v{vS+k}, v{vS+k}')
    A(f'v_add_f32 v{vl}, v{vl}, v{t0}\nv_add_f32 v{vl}, v{vl}, v{t1}')
    for k in range(4): diag(vBB + 4 * k, vS + k)
    A(f'''
    s_cmp_eq_u32 s{sRnd}, {NT-1}
    s_cbranch_scc1 L_vlast
    s_waitcnt vmcnt(4)
    L_vlastb:
    ''')
    for j in range(4): A(f'ds_read_b128 {v4(vKA+4*j)}, v{vRd} offset:{256*j}')
    A(f's_cmp_ge_u32 s{sRnd}, {NT-2}\ns_cbranch_scc1 L_vnoiss')
    issue(W)
    if late: A(f's_cmp_eq_u32 s{sRnd}, {NT-3}\ns_cbranch_scc1 L_late')
    A(f'''
    L_vnoiss:
    s_add_u32 s{sRnd}, s{sRnd}, 1
    s_cmp_lt_u32 s{sRnd}, {NT}
    ''')
    for j in range(4):
        A(f's_waitcnt lgkmcnt({3-j})')
        A(f'v_mfma_f32_16x16x32_bf16 {v4(vO)}, {v4(vKA+4*j)}, {v4(vBB+4*j)}, {v4(vO)}')
    A(f'''
    s_cbranch_scc1 L_vloop
    s_branch L_post
    L_kswitch:
    s_mov_b32 s{rK}, s{sV}
    s_mov_b32 s{rK+1}, s{sV+1}
    s_mov_b32 s{sT}, s{sFix}
    ''')
    for j in range(4): A(f'v_mov_b32 v{vDo+j}, v{vLin}')
    A(f'''
    s_branch L_knoiss
    L_vlast:
    s_waitcnt vmcnt(0)
    s_branch L_vlastb
    ''')
    if late: A('L_late:\ns_barrier\ns_branch L_vnoiss')
    A('L_post:')
    stamp(5)
    allredrows('v_add_f32', [vl], [t0])
    A(f'''
    v_lshlrev_b32 v1, 4, v{vL}
    s_sub_u32 s{sTmp2}, s{sWave}, 4
    v_add_u32 v1, {L_O}, v1
    s_lshl_b32 s{sTmp}, s{sTmp2}, 10
    v_add_u32 v2, s{sTmp}, v1
    ds_write_b128 v2, {v4(vO)}
    v_bfe_u32 v3, v{vL}, 3, 1
    v_lshlrev_b32 v3, 3, v3
    v_add_u32 v6, {L_ML}, v3
    s_lshl_b32 s{sTmp}, s{sTmp2}, 4
    v_add_u32 v2, s{sTmp}, v6
    v_mov_b32 v{vS}, v{vmL}
    v_mov_b32 v{vS+1}, v{vl}
    ds_write_b64 v2, {v2(vS)}
    s_waitcnt lgkmcnt(0)
    s_barrier
    s_cmp_eq_u32 s{sWave}, 4
    s_cbranch_scc0 L_end
    ''')
    stamp(6)
    if ts: A('s_waitcnt lgkmcnt(0)')
    vA = 80
    for i in range(4): A(f'ds_read_b64 {v2(vW+2*i)}, v6 offset:{16*i}')
    for i in range(4): A(f'ds_read_b128 {v4(vA+4*i)}, v1 offset:{1024*i}')
    A(f'''
    v_lshrrev_b32 v2, 4, v{vL}
    v_and_b32 v6, 7, v{vL}
    v_lshlrev_b32 v2, 7, v2
    v_lshl_add_u32 v2, v6, 4, v2
    v_lshl_add_u32 v2, v3, 6, v2
    v_lshlrev_b32 v3, 1, v3
    v_mov_b32 v{vS+2}, s{sTag+2}
    v_mov_b32 v{vS+3}, s{sTag+3}
    s_waitcnt lgkmcnt(4)
    v_max3_f32 v{vS}, v{vW}, v{vW+2}, v{vW+4}
    v_max_f32 v{vS}, v{vS}, v{vW+6}
    v_bfi_b32 v{vS}, v{vFF}, s{sTag}, v{vS}
    ''')
    for i in range(4): A(f'v_sub_f32 v{vW+2*i}, v{vW+2*i}, v{vS}')
    for i in range(4): A(f'v_exp_f32 v{vW+2*i}, v{vW+2*i}')
    A(f'v_mul_f32 v{vS+1}, v{vW}, v{vW+1}')
    for i in range(1, 4): A(f'v_fmac_f32 v{vS+1}, v{vW+2*i}, v{vW+2*i+1}')
    A(f'v_bfi_b32 v{vS+1}, v{vFF}, s{sTag+1}, v{vS+1}')
    A('s_waitcnt lgkmcnt(0)')
    for k in range(4): A(f'v_mul_f32 v{vO+k}, v{vW}, v{vA+k}')
    for i in range(1, 4):
        for k in range(4): A(f'v_fmac_f32 v{vO+k}, v{vW+2*i}, v{vA+4*i+k}')
    tag4(vO)
    A(f'''
    buffer_store_dwordx4 {v4(vO)}, v2, {srd(rWS)}, s{sRec} offen offset:{R_O} sc1
    s_mov_b64 exec, 0x101
    buffer_store_dwordx4 {v4(vS)}, v3, {srd(rWS)}, s{sRec} offen offset:{R_ML} sc1
    ''')
    dump_ts(1)
    A('s_endpgm')
    vWD, vG, vWO, vP = 64, 208, 64, 96
    A('L_g1:')
    if nomid: A('s_branch L_fin0')
    mksrd(rW, sDOWN, 4608*1152)
    A(f'''
    v_lshrrev_b32 v1, 3, v{vL}
    v_and_b32 v2, 7, v{vL}
    s_and_b32 s{sA}, s{sS}, 1
    s_sub_u32 s{sB}, 5, s{sA}
    s_mul_i32 s{sA}, s{sA}, 20
    s_lshr_b32 s{sTmp}, s{sS}, 1
    s_mul_i32 s{sTmp}, s{sTmp}, 36
    s_add_u32 s{sA}, s{sA}, s{sTmp}
    v_mul_u32_u24 v6, 4608, v1
    v_lshl_add_u32 v6, v2, 4, v6
    v_cmp_gt_u32 vcc, s{sB}, v1
    v_mov_b32 v{vT}, {OOB:#x}
    v_cndmask_b32 v6, v{vT}, v6, vcc
    v_cndmask_b32 v7, 0, v1, vcc
    s_mul_i32 s{sTmp}, s{sHK}, 288
    s_add_u32 s{sTmp}, s{sTmp}, s{sA}
    s_mul_i32 s{sTmp}, s{sTmp}, 1152
    ''')
    for ci in range(9):
        if ci == 4: A(f's_add_u32 s{sTmp}, s{sTmp}, 512')
        if ci == 8: A(f's_add_u32 s{sTmp}, s{sTmp}, 512')
        for j in range(4):
            A(f'buffer_load_dwordx4 {v4(vWD+16*ci+4*j)}, v6, {srd(rW)}, s{sTmp} offen offset:{128*(ci%4)+1152*j} {wflag}')
    A(f'''
    v_lshlrev_b32 v7, 4, v7
    v_lshl_add_u32 v7, v2, 13, v7
    s_lshl_b32 s{sTmp}, s{sA}, 2
    s_add_u32 s{sTmp}, s{sTmp}, s{sGrp}
    s_add_u32 s{sTmp2}, s{sTmp}, {8*REC}
    s_mov_b32 s{sCnt}, {SPIN}
    L_pollgu:
    s_sleep {gusleep}
    ''')
    for hf, so in enumerate((sTmp, sTmp2)):
        for mat in range(2):
            A(f'buffer_load_dwordx4 {v4(vG+8*hf+4*mat)}, v7, {srd(rWS)}, s{so} offen offset:{R_GU+1152*mat} sc1')
    A('s_waitcnt vmcnt(0)')
    check_tag([vG + 4 * k for k in range(4)], vT + 1, 'L_pollgu')
    for k in range(8): A(f'v_add_f32 v{vG+k}, v{vG+k}, v{vG+8+k}')
    allred8('v_add_f32', range(vG, vG + 8))
    for k in range(8): bf16r(vG + k, vG + k)
    for k in range(4): A(f'v_mul_f32 v{vG+k}, s{sL2E}, v{vG+k}')
    for k in range(4): A(f'v_exp_f32 v{vG+k}, -v{vG+k}')
    for k in range(4): A(f'v_add_f32 v{vG+k}, 1.0, v{vG+k}')
    for k in range(4): A(f'v_rcp_f32 v{vG+k}, v{vG+k}')
    for k in range(4): bf16r(vG + k, vG + k)
    for k in range(4): A(f'v_mul_f32 v{vG+k}, v{vG+k}, v{vG+4+k}')
    for k in range(4): A(f'v_cvt_pk_bf16_f32 v{vG+k}, v{vG+k}, v{vG+k}')
    hb = [vB, vB2, vS, vG + 8]
    for k in range(4): diag(hb[k], vG + k)
    A(f'''
    v_bfe_u32 v3, v{vL}, 4, 1
    v_lshlrev_b32 v3, 4, v3
    v_lshl_add_u32 v3, v2, 5, v3
    s_add_u32 s{sTmp}, s{sRec}, {R_YG}
    ''')
    for ci in range(9):
        for j in range(4):
            A(f'v_mfma_f32_16x16x32_bf16 {v4(vD)}, {v4(hb[j])}, {v4(vWD+16*ci+4*j)}, {"0" if j == 0 else v4(vD)}')
        diagadd(vO); tag4(vO)
        A(f's_mov_b64 exec, 0x00ff00ff\nbuffer_store_dwordx4 {v4(vO)}, v3, {srd(rWS)}, s{sTmp} offen offset:{256*ci} sc1\ns_mov_b64 exec, -1')
    A(f'''
    s_cmp_ge_u32 s{sS}, 9
    s_cbranch_scc1 L_fin0
    ''')
    A(f'''
    v_lshrrev_b32 v6, 4, v{vL}
    v_and_b32 v7, 15, v{vL}
    v_lshlrev_b32 v7, 4, v7
    v_lshl_add_u32 v6, v6, 13, v7
    s_lshl_b32 s{sTmp}, s{sS}, 8
    s_add_u32 s{sTmp}, s{sTmp}, s{sGrp}
    s_add_u32 s{sA}, s{sTmp}, {R_YG}
    s_mov_b32 s{sCnt}, {SPIN}
    L_pollg2:
    s_sleep 8
    s_mov_b32 s{sTmp}, s{sA}
    ''')
    for j in range(4):
        A(f'buffer_load_dwordx4 {v4(vWD+4*j)}, v6, {srd(rWS)}, s{sTmp} offen sc1')
        if j < 3: A(f's_add_u32 s{sTmp}, s{sTmp}, {4*REC}')
    A('s_waitcnt vmcnt(0)')
    check_tag([vWD + 4 * j for j in range(4)], vT + 1, 'L_pollg2')
    for j in range(1, 4):
        for k in range(4): A(f'v_add_f32 v{vWD+k}, v{vWD+k}, v{vWD+4*j+k}')
    allredrows('v_add_f32', range(vWD, vWD + 4), range(vWD + 4, vWD + 8))
    tag4(vWD)
    A(f'''
    s_add_u32 s{sTmp}, s{sRec}, {R_Y2+256}
    s_mov_b64 exec, 0xffff
    buffer_store_dwordx4 {v4(vWD)}, v7, {srd(rWS)}, s{sTmp} offen sc1
    s_mov_b64 exec, -1
    L_g1done:
    {'s_branch L_fin0' if nomid else ''}
    s_cmp_ge_u32 s{sS}, 9
    s_cbranch_scc1 L_fin0
    v_lshrrev_b32 v1, 3, v{vL}
    v_and_b32 v2, 7, v{vL}
    v_bfe_u32 v3, v{vL}, 4, 1
    v_lshlrev_b32 v3, 4, v3
    v_lshl_add_u32 v3, v2, 5, v3
    v_and_b32 v6, 15, v{vL}
    v_lshlrev_b32 v6, 3, v6
    s_lshl_b32 s{sTmp}, s{sS}, 7
    buffer_load_dwordx2 {v2(vQ)}, v6, {srd(rX)}, s{sTmp} offen
    ''')
    mksrd(rW, sWO, 4096*1152)
    A(f'''
    v_mul_u32_u24 v6, 1152, v1
    v_lshl_add_u32 v6, v2, 4, v6
    s_lshl_b32 s{sTmp}, s{sHK}, 2
    s_add_u32 s{sTmp}, s{sTmp}, s{sWave}
    s_mul_i32 s{sTmp}, s{sTmp}, {64*1152}
    s_lshl_b32 s{sTmp2}, s{sS}, 7
    s_add_u32 s{sTmp}, s{sTmp}, s{sTmp2}
    ''')
    stamp(5)
    if late: A('s_barrier')
    for i in range(8):
        A(f'buffer_load_dwordx4 {v4(vWO+4*i)}, v6, {srd(rW)}, s{sTmp} offen {wflag}')
        if i < 7: A(f's_add_u32 s{sTmp}, s{sTmp}, 9216')
    A(f'''
    v_lshlrev_b32 v6, 13, v2
    v_lshl_add_u32 v7, v1, 4, v6
    s_lshl_b32 s{sTmp}, s{sWave}, 8
    s_add_u32 s{sTmp}, s{sTmp}, s{sGrp}
    s_add_u32 s{sTmp2}, s{sTmp}, {8*REC}
    s_lshr_b32 s{sA}, s{sWave}, 1
    s_lshl_b32 s{sA}, s{sA}, 4
    s_add_u32 s{sA}, s{sA}, s{sGrp}
    s_add_u32 s{sB}, s{sA}, {8*REC}
    s_mov_b32 s{sCnt}, {SPIN}
    s_barrier
    s_setprio 3
    L_pollo:
    buffer_load_dwordx4 {v4(vP+16)}, v6, {srd(rWS)}, s{sA} offen offset:{R_ML} sc1
    buffer_load_dwordx4 {v4(vP+20)}, v6, {srd(rWS)}, s{sB} offen offset:{R_ML} sc1
    buffer_load_dwordx4 {v4(vP)}, v7, {srd(rWS)}, s{sTmp} offen offset:{R_O} sc1
    buffer_load_dwordx4 {v4(vP+4)}, v7, {srd(rWS)}, s{sTmp} offen offset:{R_O+128} sc1
    buffer_load_dwordx4 {v4(vP+8)}, v7, {srd(rWS)}, s{sTmp2} offen offset:{R_O} sc1
    buffer_load_dwordx4 {v4(vP+12)}, v7, {srd(rWS)}, s{sTmp2} offen offset:{R_O+128} sc1
    s_waitcnt vmcnt(0)
    ''')
    check_tag([vP + 4 * k for k in range(6)], vT + 1, 'L_pollo')
    stamp(6)
    mA, lA, mB, lB = vP + 16, vP + 17, vP + 20, vP + 21
    A(f'v_max_f32 v{vT}, v{mA}, v{mB}')
    allred8('v_max_f32', [vT])
    A(f'''
    v_sub_f32 v{mA}, v{mA}, v{vT}
    v_sub_f32 v{mB}, v{mB}, v{vT}
    v_exp_f32 v{mA}, v{mA}
    v_exp_f32 v{mB}, v{mB}
    v_mul_f32 v{lA}, v{mA}, v{lA}
    v_fmac_f32 v{lA}, v{mB}, v{lB}
    ''')
    for k in range(8): A(f'v_mul_f32 v{vP+k}, v{mA}, v{vP+k}')
    for k in range(8): A(f'v_fmac_f32 v{vP+k}, v{mB}, v{vP+8+k}')
    allred8('v_add_f32', [lA] + list(range(vP, vP + 8)))
    A(f'v_rcp_f32 v{lA}, v{lA}')
    for k in range(8): A(f'v_mul_f32 v{vP+k}, v{lA}, v{vP+k}')
    for k in range(8): A(f'v_cvt_pk_bf16_f32 v{vP+k}, v{vP+k}, v{vP+k}')
    for k in range(8):
        bb = vB if k % 2 == 0 else vB2
        diag(bb, vP + k)
        A(f'v_mfma_f32_16x16x32_bf16 {v4(vD)}, {v4(bb)}, {v4(vWO+4*k)}, {"0" if k == 0 else v4(vD)}')
    A(f'''
    v_lshrrev_b32 v6, 5, v{vL}
    v_lshl_add_u32 v6, v6, 8, v3
    s_lshl_b32 s{sTmp}, s{sWave}, 9
    s_add_u32 s{sTmp}, s{sTmp}, {L_Y}
    v_add_u32 v6, s{sTmp}, v6
    s_mov_b32 exec_lo, 0x00ff00ff
    s_mov_b32 exec_hi, 0xff00ff00
    ds_write_b128 v6, {v4(vD)}
    s_mov_b64 exec, -1
    s_waitcnt lgkmcnt(0)
    s_barrier
    s_cmp_eq_u32 s{sWave}, 0
    s_cbranch_scc0 L_end
    v_lshlrev_b32 v6, 4, v{vL}
    v_add_u32 v6, {L_Y}, v6
    ds_read_b128 {v4(vO)}, v6
    ds_read_b128 {v4(vS)}, v6 offset:1024
    v_and_b32 v7, 15, v{vL}
    v_lshlrev_b32 v7, 4, v7
    s_add_u32 s{sTmp}, s{sRec}, {R_Y2}
    s_waitcnt lgkmcnt(0)
    ''')
    for k in range(4): A(f'v_add_f32 v{vO+k}, v{vO+k}, v{vS+k}')
    allredrows('v_add_f32', range(vO, vO + 4), range(vS, vS + 4))
    tag4(vO)
    A(f'''
    s_mov_b64 exec, 0xffff
    buffer_store_dwordx4 {v4(vO)}, v7, {srd(rWS)}, s{sTmp} offen sc1
    s_mov_b64 exec, -1
    s_cmp_eq_u32 s{sHK}, s{sS}
    s_cbranch_scc0 L_fin0
    ''')
    A(f'''
    v_lshrrev_b32 v6, 4, v{vL}
    v_lshl_add_u32 v6, v6, 17, v7
    s_lshl_b32 s{sA}, s{sS}, 13
    s_add_u32 s{sA}, s{sA}, {R_Y2}
    s_mov_b32 s{sCnt}, {SPIN}
    ''')
    mksrd(rW, sOUT, 1152)
    mksrd(rX, sWS, 4)
    A(f'L_polly:\ns_mov_b32 s{sTmp}, s{sA}')
    for j in range(4):
        A(f'buffer_load_dwordx4 {v4(vWD+4*j)}, v6, {srd(rWS)}, s{sTmp} offen sc1')
        A(f'buffer_load_dwordx4 {v4(vWD+16+4*j)}, v6, {srd(rWS)}, s{sTmp} offen offset:256 sc1')
        if j < 3: A(f's_add_u32 s{sTmp}, s{sTmp}, {64*REC}')
    A('s_waitcnt vmcnt(0)')
    check_tag([vWD + 4 * j for j in range(8)], vT + 1, 'L_polly')
    for j in range(1, 4):
        for k in range(4): A(f'v_add_f32 v{vWD+k}, v{vWD+k}, v{vWD+4*j+k}')
        for k in range(4): A(f'v_add_f32 v{vWD+16+k}, v{vWD+16+k}, v{vWD+16+4*j+k}')
    rs = list(range(vWD, vWD + 4)) + list(range(vWD + 16, vWD + 20))
    allredrows('v_add_f32', rs, list(range(vWD + 4, vWD + 12)))
    for r in rs: bf16r(r, r)
    A(f'''
    v_lshlrev_b32 v{vS}, 16, v{vQ}
    v_and_b32 v{vS+1}, 0xffff0000, v{vQ}
    v_lshlrev_b32 v{vS+2}, 16, v{vQ+1}
    v_and_b32 v{vS+3}, 0xffff0000, v{vQ+1}
    ''')
    for k in range(4): A(f'v_add_f32 v{vS+k}, v{vS+k}, v{vWD+k}')
    for k in range(4): bf16r(vS + k, vS + k)
    for k in range(4): A(f'v_add_f32 v{vS+k}, v{vS+k}, v{vWD+16+k}')
    A(f'''
    v_cvt_pk_bf16_f32 v{vS}, v{vS}, v{vS+1}
    v_cvt_pk_bf16_f32 v{vS+1}, v{vS+2}, v{vS+3}
    v_lshrrev_b32 v7, 1, v7
    s_lshl_b32 s{sTmp}, s{sS}, 7
    s_mov_b64 exec, 0xffff
    buffer_store_dwordx2 {v2(vS)}, v7, {srd(rW)}, s{sTmp} offen
    s_cmp_eq_u32 s2, 0
    s_cbranch_scc0 L_fin0
    s_mov_b64 exec, 1
    v_mov_b32 v1, s{sTag}
    buffer_store_dword v1, v7, {srd(rX)}, 0 offen sc1
    L_fin0:
    ''')
    if ts:
        A(f's_cmp_eq_u32 s{sWave}, 0\ns_cbranch_scc0 L_end')
        dump_ts(0)
    A('L_end:\ns_endpgm')
    body, pads = fix('\n'.join(o))
    src = HEADER + f'''; Generated by my own generator script (hand-designed instruction stream); W={W}
; @launch grid=(256,1,1) block=(512,1,1) lds={LDS_BYTES}
.amdgcn_target "amdgcn-amd-amdhsa--gfx950"
.text
.globl {NAME}
.p2align 8
.type {NAME},@function
{body}
.section .rodata,"a"
.p2align 6
.amdhsa_kernel {NAME}
  .amdhsa_next_free_vgpr {NV}
  .amdhsa_next_free_sgpr 96
  .amdhsa_accum_offset {(NV+3)//4*4}
  .amdhsa_group_segment_fixed_size 0
  .amdhsa_kernarg_size 96
  .amdhsa_user_sgpr_count 2
  .amdhsa_user_sgpr_kernarg_segment_ptr 1
  .amdhsa_system_sgpr_workgroup_id_x 1
  .amdhsa_float_denorm_mode_32 3
.end_amdhsa_kernel
'''
    return src, NV, pads

if __name__ == '__main__':
    import argparse, ast
    ap = argparse.ArgumentParser()
    ap.add_argument('-o', default='parallel_sum__gqa_block_cached__glu_gated_glu__decode.s')
    ap.add_argument('kw', nargs='*')
    a = ap.parse_args()
    kw = {}
    for x in a.kw:
        k, v = x.split('=', 1)
        try: kw[k] = ast.literal_eval(v)
        except Exception: kw[k] = v
    src, nv, pads = gen(**kw)
    open(a.o, 'w').write(src)
    print('vgprs', nv, 'pad states', pads, 'lines', src.count('\n'))
```

```python
import sys
from hazard import fix

NAME = 'parallel_sum__gqa_block_cached__glu_gated_glu__decode_kernel'
HEADER = open('parallel_sum__gqa_block_cached__glu_gated_glu__decode.s.ref').read().split('; Override launch')[0]

REC = 8192
WS_REC = 65536
R_Q, R_GU, R_O, R_YG, R_Y2 = 0, 512, 2816, 4352, 6656
RING = 8
L_SC = 4 * RING * 4096
L_Q = L_SC + 16384
L_O = L_Q + 512
L_ML = L_O + 4096
L_Y = L_ML + 128
L_YG = L_Y + 2048
L_H = L_YG + 1024
L_CNT = L_H + 128
LDS_BYTES = L_CNT + 16
NT = 64
LOG2E = 0x3FB8AA3B
SCALE = 0x3DB504F3
INV576 = 0x3AE38E39
EPS = 0x3727C5AC
SPIN = 1 << 18
OOB = 0x7ff00000

def gen(W=5, ts=False, kvflag='nt', wflag='nt', qsleep=0, nomid=False, nopro=False, late=True, exp='', guprio=2, gusleep=16,
        bits='r0 r1 g0 g1 j0 j1 t0 t1 t2 t3 t4 t5 s0 s1 s2 s3', WP=None, diagT=0, laten=1, latesleep=4, osleep=0):
    if WP is None: WP = W
    o = []
    def A(s):
        for l in s.strip('\n').split('\n'):
            l = l.strip()
            if not l: continue
            o.append(l if l.endswith(':') else '  ' + l)
    uid = [0]
    def lab(p):
        uid[0] += 1
        return f'L_{p}_{uid[0]}'

    sX, sK, sV, sWQ, sWO, sGATE, sUP, sDOWN, sOUT, sDBG, sWS = 4, 6, 8, 10, 12, 16, 18, 20, 22, 24, 26
    rK, rV, rX, rW, rWS = 28, 32, 36, 40, 44
    rW2 = rK
    sTag = 48
    sWave, sHK, sS = 3, 52, 53
    sT, sRnd, sTmp, sTmp2, sCnt, sRec, sGrp = 54, 55, 56, 57, 58, 59, 60
    sHI, sL2E, sSC = 62, 64, 65
    sA, sB = 66, 67
    sTS = 70
    def srd(r): return f's[{r}:{r+3}]'
    vL, vFF = 0, 50
    vM = 8; vQ = 12; vO = 28; vS = 32; vB = 36; vB2 = 40
    vm, vmL, vl = 44, 45, 46
    vT = 47
    vD = 60; vD1 = 56
    vW = 64
    NV = 256
    def v4(r): return f'v[{r}:{r+3}]'
    def v2(r): return f'v[{r}:{r+1}]'

    def stamp(i):
        if ts: A(f's_memrealtime s[{sTS+2*i}:{sTS+2*i+1}]')
    def dump_ts(slot):
        if not ts: return
        A('s_mov_b64 exec, -1')
        stamp(7)
        A(f's_waitcnt lgkmcnt(0)')
        A(f's_add_u32 s28, s{sWS}, 0x20000000\ns_addc_u32 s29, s{sWS+1}, 0\ns_mov_b32 s30, 0x100000\ns_mov_b32 s31, 0x20000')
        A(f's_lshl_b32 s{sTmp}, s2, 8\ns_add_u32 s{sTmp}, s{sTmp}, {slot*64}\nv_mov_b32 v1, 0')
        for i in range(8):
            A(f'v_mov_b32 v2, s{sTS+2*i}\nbuffer_store_dword v2, v1, s[28:31], s{sTmp} offen offset:{4*i}')

    def allred16(op, r):
        for m in ('quad_perm:[1,0,3,2]', 'quad_perm:[2,3,0,1]', 'row_half_mirror', 'row_mirror'):
            A(f'{op}_dpp v{r}, v{r}, v{r} {m} row_mask:0xf bank_mask:0xf')
    def allred8(op, rs):
        for m in ('quad_perm:[1,0,3,2]', 'quad_perm:[2,3,0,1]', 'row_half_mirror'):
            for r in rs:
                A(f'{op}_dpp v{r}, v{r}, v{r} {m} row_mask:0xf bank_mask:0xf')
    def allredrows(op, rs, ts_):
        for sw in ('v_permlane16_swap_b32', 'v_permlane32_swap_b32'):
            for r, t in zip(rs, ts_): A(f'v_mov_b32 v{t}, v{r}')
            for r, t in zip(rs, ts_): A(f'{sw} v{r}, v{t}')
            for r, t in zip(rs, ts_): A(f'{op} v{r}, v{r}, v{t}')
    def bf16r(dst, src):
        A(f'v_cvt_pk_bf16_f32 v{dst}, v{src}, v{src}\nv_lshlrev_b32 v{dst}, 16, v{dst}')
    def diag(dst, src):
        for w in range(4): A(f'v_and_b32 v{dst+w}, v{src}, v{vM+w}')
    def tag4(r):
        for k in range(4): A(f'v_bfi_b32 v{r+k}, v{vFF}, s{sTag+k}, v{r+k}')
    def check_tag(grans, t, retry):
        first = True
        for g in grans:
            for k in range(4):
                if first: A(f'v_xor_b32 v{t}, s{sTag+k}, v{g+k}'); first = False
                else: A(f'v_bitop3_b32 v{t}, v{t}, v{g+k}, s{sTag+k} bitop3:0xf6')
        done = lab('got')
        A(f'v_and_b32 v{t}, 0xff, v{t}\nv_cmp_ne_u32 vcc, 0, v{t}\ns_cbranch_vccz {done}')
        A(f's_sub_u32 s{sCnt}, s{sCnt}, 1\ns_cbranch_scc0 {retry}\n{done}:')
    def diagadd(dst):
        for k in range(4): A(f'v_mov_b32 v{vD1+k}, v{vD+k}')
        for k in range(4): A(f'v_permlane32_swap_b32 v{vD+k}, v{vD1+k}')
        for k in range(4): A(f'v_add_f32_dpp v{dst+k}, v{vD1+k}, v{vD+k} row_ror:8 row_mask:0xf bank_mask:0xf')
    def mksrd(r, ptr, size):
        A(f's_mov_b32 s{r}, s{ptr}\ns_mov_b32 s{r+1}, s{ptr+1}\ns_mov_b32 s{r+2}, {size}\ns_mov_b32 s{r+3}, 0x20000')

    toks = bits.split()
    pos = {t: 8 + i for i, t in enumerate(toks)}
    assert len(pos) == 16 and [pos[t] for t in ('r0', 'r1', 'g0', 'g1')] == [8, 9, 10, 11]
    tp = [pos['t%d' % b] for b in range(6)]
    assert tp == list(range(tp[0], tp[0] + 6))
    sFix, sIss, sCon, sRing = 68, 69, 32, 33
    vDo = 64
    vLin, vAK, vAV, vSc = 68, 69, 70, 71
    vRd = 72
    vKA = 76
    vBB = 92
    def issue(w):
        A(f's_add_u32 m0, s{sRing}, s{sIss}\ns_add_u32 s{sIss}, s{sIss}, 4096\ns_and_b32 s{sIss}, s{sIss}, {RING*4096-1}')
        for j in range(4):
            A(f's_waitcnt vmcnt({w-1})')
            A(f'buffer_load_dwordx4 v{vDo+j}, {srd(rK)}, s{sT} offen offset:{1024*j} {kvflag} lds')
        A(f's_add_u32 s{sT}, s{sT}, {1 << tp[0]}')
    def masks():
        A(f'''
        v_and_b32 v{vT}, 1, v{vL}
        v_lshlrev_b32 v{vT}, 4, v{vT}
        v_mov_b32 v{vT+1}, 0xffff
        v_lshlrev_b32 v{vT}, v{vT}, v{vT+1}
        v_bfe_u32 v{vT+1}, v{vL}, 1, 2
        ''')
        for w in range(4):
            A(f'v_cmp_eq_u32 vcc, {w}, v{vT+1}\nv_cndmask_b32 v{vM+w}, 0, v{vT}, vcc')
    def common_setup():
        A(f'''
        s_lshl_b32 s{sRec}, s2, 13
        s_lshl_b32 s{sGrp}, s{sHK}, 17
        s_mov_b32 s{sHI}, 0
        s_mov_b32 s{sHI+1}, -1
        s_mov_b32 s{sL2E}, {LOG2E:#x}
        s_mov_b32 s{sSC}, {SCALE:#x}
        s_add_u32 s{rWS}, s{sWS}, {WS_REC}
        s_addc_u32 s{rWS+1}, s{sWS+1}, 0
        s_mov_b32 s{rWS+2}, {256*REC}
        s_mov_b32 s{rWS+3}, 0x20000
        ''')
    def kv_setup():
        A(f'''
        v_and_b32 v1, 15, v{vL}
        v_lshrrev_b32 v2, 4, v{vL}
        v_xor_b32 v3, v1, v2
        v_lshlrev_b32 v3, 4, v3
        v_lshl_add_u32 v{vDo}, v2, 8, v3
        v_xor_b32 v{vDo+1}, 64, v{vDo}
        v_xor_b32 v{vDo+2}, 0x80, v{vDo}
        v_xor_b32 v{vDo+3}, 0xc0, v{vDo}
        ''')
        first = True
        for nm, reg, n in (('j', sWave, 2), ('s', sS, 4)):
            b_ = 0
            while b_ < n:
                e_ = b_
                while e_ + 1 < n and pos[f'{nm}{e_+1}'] == pos[f'{nm}{e_}'] + 1: e_ += 1
                A(f's_bfe_u32 s{sTmp}, s{reg}, {b_ | ((e_-b_+1) << 16):#x}')
                if first: A(f's_lshl_b32 s{sT}, s{sTmp}, {pos[f"{nm}{b_}"]}'); first = False
                else: A(f's_lshl_b32 s{sTmp}, s{sTmp}, {pos[f"{nm}{b_}"]}\ns_or_b32 s{sT}, s{sT}, s{sTmp}')
                b_ = e_ + 1
        A(f'''
        s_mov_b32 s{sFix}, s{sT}
        s_and_b32 s{sRing}, s{sWave}, 3
        s_mul_i32 s{sRing}, s{sRing}, {RING*4096}
        s_mov_b32 s{sIss}, 0
        s_mov_b32 s{sCon}, 0
        s_lshl_b32 s{sTmp2}, s{sHK}, 24
        s_mov_b32 s{rK+2}, 0x1000000
        s_mov_b32 s{rK+3}, 0x20000
        s_waitcnt lgkmcnt(0)
        s_add_u32 s{rK}, s{sK}, s{sTmp2}
        s_addc_u32 s{rK+1}, s{sK+1}, 0
        s_add_u32 s{sV}, s{sV}, s{sTmp2}
        s_addc_u32 s{sV+1}, s{sV+1}, 0
        ''')
    def tag_setup():
        A(f'''
        s_waitcnt lgkmcnt(0)
        s_add_u32 s{sTag}, s{sTag}, 0x04030201
        s_lshr_b32 s{sTag+1}, s{sTag}, 8
        s_lshr_b32 s{sTag+2}, s{sTag}, 16
        s_lshr_b32 s{sTag+3}, s{sTag}, 24
        ''')
    vX4, vX1 = 52, 51
    a, b, c_ = 38, 39, 40
    def ln_stats():
        f = 28
        for k in range(4):
            A(f'v_lshlrev_b32 v{f+2*k}, 16, v{vX4+k}\nv_and_b32 v{f+2*k+1}, 0xffff0000, v{vX4+k}')
        A(f'v_lshlrev_b32 v{f+8}, 16, v{vX1}\nv_and_b32 v{f+9}, 0xffff0000, v{vX1}')
        A(f'v_add_f32 v{a}, v{f}, v{f+1}\nv_add_f32 v{b}, v{f+2}, v{f+3}')
        for k in (4, 6, 8): A(f'v_add_f32 v{a}, v{a}, v{f+k}\nv_add_f32 v{b}, v{b}, v{f+k+1}')
        A(f'v_add_f32 v{a}, v{a}, v{b}')
        allred16('v_add_f32', a); allredrows('v_add_f32', [a], [b])
        A(f'v_mul_f32 v{a}, {INV576:#x}, v{a}')
        for k in range(10): A(f'v_sub_f32 v{f+k}, v{f+k}, v{a}')
        A(f'v_cndmask_b32 v{f+8}, v{f+8}, 0, s[{sHI}:{sHI+1}]\nv_cndmask_b32 v{f+9}, v{f+9}, 0, s[{sHI}:{sHI+1}]')
        A(f'v_mul_f32 v{b}, v{f}, v{f}\nv_mul_f32 v{c_}, v{f+1}, v{f+1}')
        for k in (2, 4, 6, 8): A(f'v_fmac_f32 v{b}, v{f+k}, v{f+k}\nv_fmac_f32 v{c_}, v{f+k+1}, v{f+k+1}')
        A(f'v_add_f32 v{b}, v{b}, v{c_}')
        allred16('v_add_f32', b); allredrows('v_add_f32', [b], [c_])
        A(f'v_mul_f32 v{b}, {INV576:#x}, v{b}')
        bf16r(a, a); bf16r(b, b)
        A(f'v_add_f32 v{b}, {EPS:#x}, v{b}'); bf16r(b, b)
        A(f'v_sqrt_f32 v{b}, v{b}'); bf16r(b, b)
        A(f'v_rcp_f32 v{b}, v{b}')
    def normalize(rs):
        for r in rs: A(f'v_sub_f32 v{r}, v{r}, v{a}')
        for r in rs: A(f'v_cvt_pk_bf16_f32 v{r}, v{r}, v{r}')
        for r in rs: A(f'v_lshlrev_b32 v{r}, 16, v{r}')
        for r in rs: A(f'v_mul_f32 v{r}, v{r}, v{b}')
        for r in rs: A(f'v_cvt_pk_bf16_f32 v{r}, v{r}, v{r}')
    def xstat_loads():
        A(f'''
        buffer_load_dwordx4 {v4(vX4)}, v7, {srd(rX)}, 0 offen
        buffer_load_dword v{vX1}, v6, {srd(rX)}, 0 offen offset:1024
        ''')

    A(f'{NAME}:')
    A(f'''
    s_cmp_ge_u32 s2, 256
    s_cbranch_scc1 L_end
    s_load_dwordx16 s[4:19], s[0:1], 0
    s_load_dwordx8 s[20:27], s[0:1], 64
    ''')
    if ts:
        for i in range(16): A(f's_mov_b32 s{sTS+i}, 0')
    stamp(0)
    if diagT: A('s_memrealtime s[90:91]')
    A(f'''
    v_lshrrev_b32 v1, 6, v0
    v_and_b32 v{vL}, 63, v0
    v_readfirstlane_b32 s{sWave}, v1
    s_lshr_b32 s{sHK}, s2, 4
    s_and_b32 s{sS}, s2, 15
    v_lshlrev_b32 v7, 4, v{vL}
    v_lshlrev_b32 v6, 2, v{vL}
    s_mov_b32 s{rX+2}, 1152
    s_mov_b32 s{rX+3}, 0x20000
    s_mov_b32 s{rW+3}, 0x20000
    s_cmp_ge_u32 s{sWave}, 4
    s_cbranch_scc1 L_stream
    s_cmp_eq_u32 s{sWave}, 0
    s_cbranch_scc0 L_notw0
    ''')
    if nopro: o[-2:] = ['  s_branch L_end']
    vXP = 64
    vXD0 = 74
    vWQ = 100
    A(f'''
    s_setprio 3
    v_lshrrev_b32 v1, 3, v{vL}
    v_and_b32 v2, 7, v{vL}
    s_lshr_b32 s{sTmp}, s{sS}, 2
    s_mul_i32 s{sTmp}, s{sTmp}, 144
    v_mad_u32_u24 v1, v1, 18, s{sTmp}
    v_lshlrev_b32 v3, 13, v1
    v_lshl_add_u32 v3, v2, 4, v3
    v_lshlrev_b32 v1, 1, v1
    s_and_b32 s{sTmp}, s{sS}, 3
    s_lshl_b32 s{sTmp}, s{sTmp}, 7
    s_lshl_b32 s{sTmp2}, s{sHK}, 9
    s_add_u32 s{sTmp}, s{sTmp}, s{sTmp2}
    s_mov_b32 s{rW+2}, {576*8192}
    s_waitcnt lgkmcnt(0)
    s_mov_b32 s{rX}, s{sX}
    s_mov_b32 s{rX+1}, s{sX+1}
    s_mov_b32 s{rW}, s{sWQ}
    s_mov_b32 s{rW+1}, s{sWQ+1}
    s_load_dword s{sTag}, s[{sWS}:{sWS+1}], 0
    ''')
    xstat_loads()
    A(f'''
    buffer_load_dwordx4 {v4(vXP)}, v1, {srd(rX)}, 0 offen
    buffer_load_dwordx4 {v4(vXP+4)}, v1, {srd(rX)}, 0 offen offset:16
    buffer_load_dword v{vXP+8}, v1, {srd(rX)}, 0 offen offset:32
    ''')
    for j in range(18):
        A(f'buffer_load_dwordx4 {v4(vWQ+4*j)}, v3, {srd(rW)}, s{sTmp} offen {wflag}')
        if j < 17: A(f's_add_u32 s{sTmp}, s{sTmp}, 8192')
    common_setup(); masks()
    A(f'''
    v_mov_b32 v{vFF}, 0xff
    v_bfe_u32 v3, v{vL}, 4, 1
    v_lshlrev_b32 v3, 5, v3
    v_lshl_add_u32 v3, v2, 6, v3
    v_lshrrev_b32 v2, 5, v{vL}
    v_lshl_add_u32 v3, v2, 4, v3
    v_lshrrev_b32 v2, 4, v{vL}
    v_and_b32 v1, 15, v{vL}
    v_lshlrev_b32 v1, 5, v1
    v_lshl_add_u32 v1, v2, 13, v1
    v_lshlrev_b32 v2, 3, v{vL}
    v_add_u32 v2, {L_Q}, v2
    ''')
    A(f'v_mov_b32 v6, {L_CNT}')
    for k in range(4): A(f'v_mov_b32 v{vS+k}, 0')
    A(f'ds_write_b128 v6, {v4(vS)}')
    tag_setup()
    A('s_waitcnt vmcnt(18)')
    stamp(1)
    ln_stats()
    for i in range(9):
        A(f'v_lshlrev_b32 v{vXD0+2*i}, 16, v{vXP+i}\nv_and_b32 v{vXD0+2*i+1}, 0xffff0000, v{vXP+i}')
    normalize(range(vXD0, vXD0 + 18))
    for j in range(18):
        bb = vB if j % 2 == 0 else vB2
        diag(bb, vXD0 + j)
        if j % 6 == 0: A(f's_waitcnt vmcnt({12-j})')
        A(f'v_mfma_f32_16x16x32_bf16 {v4(vD)}, {v4(bb)}, {v4(vWQ+4*j)}, {"0" if j == 0 else v4(vD)}')
    stamp(2)
    if 'noqx' in exp: A('s_branch L_gotq')
    diagadd(vO)
    A(f'''
    v_cndmask_b32 v{vS}, v{vO}, v{vO+2}, s[{sHI}:{sHI+1}]
    v_mov_b32 v{vS+1}, s{sTag}
    v_cndmask_b32 v{vS+2}, v{vO+1}, v{vO+3}, s[{sHI}:{sHI+1}]
    v_mov_b32 v{vS+3}, s{sTag}
    s_mov_b32 exec_lo, 0x00ff00ff
    s_mov_b32 exec_hi, 0x00ff00ff
    buffer_store_dwordx4 {v4(vS)}, v3, {srd(rWS)}, s{sRec} offen sc1
    s_mov_b64 exec, -1
    s_add_u32 s{sA}, s{sGrp}, {4*REC}
    s_add_u32 s{sB}, s{sGrp}, {8*REC}
    s_add_u32 s{sTmp}, s{sGrp}, {12*REC}
    s_mov_b32 s{sCnt}, {SPIN}
    ''')
    stamp(3)
    A('L_pollq:')
    if qsleep: A(f's_sleep {qsleep}')
    for p, so in enumerate((sGrp, sA, sB, sTmp)):
        A(f'buffer_load_dwordx4 {v4(vW+8*p)}, v1, {srd(rWS)}, s{so} offen sc1')
        A(f'buffer_load_dwordx4 {v4(vW+8*p+4)}, v1, {srd(rWS)}, s{so} offen offset:16 sc1')
    A('s_waitcnt vmcnt(0)')
    A(f'v_xor_b32 v{vT}, s{sTag}, v{vW+1}')
    for k in range(3, 32, 2): A(f'v_bitop3_b32 v{vT}, v{vT}, v{vW+k}, s{sTag} bitop3:0xf6')
    A(f'''
    v_cmp_ne_u32 vcc, 0, v{vT}
    s_cbranch_vccz L_gotq
    s_sub_u32 s{sCnt}, s{sCnt}, 1
    s_cbranch_scc0 L_pollq
    L_gotq:
    ''')
    stamp(4)
    for k in range(0, 8, 2): A(f'v_add_f32 v{vW+k}, v{vW+k}, v{vW+8+k}')
    for k in range(0, 8, 2): A(f'v_add_f32 v{vW+16+k}, v{vW+16+k}, v{vW+24+k}')
    for k in range(0, 8, 2): A(f'v_add_f32 v{vW+k}, v{vW+k}, v{vW+16+k}')
    A(f'''
    v_cvt_pk_bf16_f32 v{vS}, v{vW}, v{vW+2}
    v_cvt_pk_bf16_f32 v{vS+1}, v{vW+4}, v{vW+6}
    ds_write_b64 v2, {v2(vS)}
    s_waitcnt lgkmcnt(0)
    s_barrier
    s_branch L_wait
    ''')
    vXD = vQ
    A(f'''
    L_notw0:
    {'s_branch L_end' if 'nogu' in exp.split() else ''}
    s_setprio {guprio}
    v_and_b32 v1, 15, v{vL}
    v_lshrrev_b32 v2, 4, v{vL}
    s_mul_i32 s{sTmp}, s{sS}, 36
    v_add_u32 v2, s{sTmp}, v2
    s_mul_i32 s{sTmp}, s{sHK}, 576
    s_bitcmp1_b32 s{sHK}, 0
    s_cselect_b32 s{sCnt}, 64, 0
    s_cselect_b32 s{sA}, 0, 512
    s_cmp_eq_u32 s{sWave}, 3
    s_cselect_b32 s{sB}, 4, 16
    s_cselect_b32 s{sCnt}, s{sA}, s{sCnt}
    s_cselect_b32 s{sRnd}, 0, 256
    s_movk_i32 s{sT}, 512
    s_cselect_b32 s{sT}, 1152, s{sT}
    s_lshl_b32 s{sA}, s{sCnt}, 1
    s_add_u32 s{sTmp}, s{sTmp}, s{sCnt}
    s_add_u32 s{sTmp2}, s{sTmp}, s{sRnd}
    v_mul_u32_u24 v3, 9216, v2
    v_lshl_add_u32 v3, v1, 4, v3
    v_cmp_gt_u32 vcc, s{sB}, v1
    v_mov_b32 v{vT}, {OOB:#x}
    v_cndmask_b32 v3, v{vT}, v3, vcc
    v_lshlrev_b32 v2, 1, v2
    s_mov_b32 s{rW+2}, {576*9216}
    s_mov_b32 s{rW2+2}, {576*9216}
    s_mov_b32 s{rW2+3}, 0x20000
    s_waitcnt lgkmcnt(0)
    s_mov_b32 s{rX}, s{sX}
    s_mov_b32 s{rX+1}, s{sX+1}
    s_cmp_eq_u32 s{sWave}, 2
    s_cselect_b32 s{rW}, s{sUP}, s{sGATE}
    s_cselect_b32 s{rW+1}, s{sUP+1}, s{sGATE+1}
    s_cselect_b32 s{sCnt}, 1152, 0
    s_add_u32 s{sA}, s{sA}, s{sCnt}
    s_cmp_eq_u32 s{sWave}, 1
    s_cselect_b32 s{rW2}, s{sGATE}, s{sUP}
    s_cselect_b32 s{rW2+1}, s{sGATE+1}, s{sUP+1}
    s_load_dword s{sTag}, s[{sWS}:{sWS+1}], 0
    ''')
    xstat_loads()
    for j in range(9): A(f'buffer_load_ushort v{vXD+j}, v2, {srd(rX)}, 0 offen offset:{8*j}')
    for j in range(9):
        A(f'buffer_load_dwordx4 {v4(vW+8*j)}, v3, {srd(rW)}, s{sTmp} offen {wflag}')
        A(f'buffer_load_dwordx4 {v4(vW+8*j+4)}, v3, {srd(rW2)}, s{sTmp2} offen {wflag}')
        if j < 8: A(f's_add_u32 s{sTmp}, s{sTmp}, {4*9216}\ns_add_u32 s{sTmp2}, s{sTmp2}, {4*9216}')
    common_setup(); masks()
    A(f'''
    v_mov_b32 v{vFF}, 0xff
    s_add_u32 s{sA}, s{sA}, s{sRec}
    v_cmp_gt_u32 vcc, s{sB}, v1
    v_lshlrev_b32 v1, 5, v1
    v_bfe_u32 v2, v{vL}, 4, 1
    v_lshl_add_u32 v1, v2, 4, v1
    v_lshrrev_b32 v2, 5, v{vL}
    v_mad_u32_u24 v1, v2, s{sT}, v1
    v_mov_b32 v2, {OOB:#x}
    v_cndmask_b32 v1, v2, v1, vcc
    ''')
    tag_setup()
    A(f's_waitcnt vmcnt(18)')
    ln_stats()
    for j in range(9): A(f'v_lshlrev_b32 v{vXD+j}, 16, v{vXD+j}')
    normalize(range(vXD, vXD + 9))
    for j in range(9):
        bb = vB if j % 2 == 0 else vB2
        diag(bb, vXD + j)
        if j % 3 == 0: A(f's_waitcnt vmcnt({12-2*j})')
        A(f'v_mfma_f32_16x16x32_bf16 {v4(vD)}, {v4(bb)}, {v4(vW+8*j)}, {"0" if j == 0 else v4(vD)}')
        A(f'v_mfma_f32_16x16x32_bf16 {v4(vD1)}, {v4(bb)}, {v4(vW+8*j+4)}, {"0" if j == 0 else v4(vD1)}')
    for k in range(4): A(f'v_cndmask_b32 v{vD+k}, v{vD+k}, v{vD1+k}, s[{sHI}:{sHI+1}]')
    tag4(vD)
    A(f'''
    {'' if 'nogupub' in exp else f'buffer_store_dwordx4 {v4(vD)}, v1, {srd(rWS)}, s{sA} offen offset:{R_GU} sc1'}
    s_barrier
    s_cmp_eq_u32 s{sWave}, 1
    s_cbranch_scc1 L_g1
    s_branch L_wait
    L_stream:
    s_setprio 1
    ''')
    kv_setup()
    A(f's_load_dword s{sTag}, s[{sWS}:{sWS+1}], 0\ns_mov_b32 s{sRnd}, {RING}\nL_pre:')
    issue(WP)
    A(f's_sub_u32 s{sRnd}, s{sRnd}, 1\ns_cmp_lg_u32 s{sRnd}, 0\ns_cbranch_scc1 L_pre')
    stamp(1)
    common_setup(); masks()
    A(f'''
    v_mov_b32 v{vFF}, 0xff
    v_lshlrev_b32 v{vLin}, 4, v{vL}
    v_lshl_add_u32 v{vAK}, v1, 8, v3
    v_add_u32 v{vAK}, s{sRing}, v{vAK}
    v_lshlrev_b32 v{vAV}, 4, v1
    v_lshl_add_u32 v{vAV}, v2, 10, v{vAV}
    v_add_u32 v{vAV}, s{sRing}, v{vAV}
    v_lshrrev_b32 v{vSc}, 3, v{vL}
    v_lshlrev_b32 v{vSc}, 3, v{vSc}
    s_and_b32 s{sTmp}, s{sWave}, 3
    s_lshl_b32 s{sTmp}, s{sTmp}, 12
    s_add_u32 s{sTmp}, s{sTmp}, {L_SC}
    v_add_u32 v{vSc}, s{sTmp}, v{vSc}
    ''')
    tag_setup()
    A('s_barrier')
    t0, t1 = 48, 49
    A(f'''
    v_bfe_u32 v1, v{vL}, 3, 1
    v_lshlrev_b32 v1, 8, v1
    v_lshl_add_u32 v1, v2, 4, v1
    v_add_u32 v1, {L_Q}, v1
    ''')
    for j in range(4): A(f'ds_read_b128 {v4(vQ+4*j)}, v1 offset:{64*j}')
    stamp(3)
    for k in range(4): A(f'v_mov_b32 v{vO+k}, 0')
    A(f'''
    v_mov_b32 v{vm}, 0xf149f2ca
    v_mov_b32 v{vl}, 0
    s_mov_b32 s{sRnd}, 0
    L_kloop:
    v_add_u32 v{vRd}, s{sCon}, v{vAK}
    v_xor_b32 v{vRd+1}, 64, v{vRd}
    v_xor_b32 v{vRd+2}, 0x80, v{vRd}
    v_xor_b32 v{vRd+3}, 0xc0, v{vRd}
    s_add_u32 s{sCon}, s{sCon}, 4096
    s_and_b32 s{sCon}, s{sCon}, {RING*4096-1}
    s_waitcnt vmcnt(4)
    ''')
    for j in range(4): A(f'ds_read_b128 {v4(vKA+4*j)}, v{vRd+j}')
    A(f'''
    s_cmp_lt_u32 s{sRnd}, {2*(RING-2)}
    s_cselect_b32 s{sTmp}, s{sRnd}, 1
    s_bitcmp1_b32 s{sTmp}, 0
    s_cbranch_scc0 L_knoiss
    ''')
    issue(W)
    A(f'''
    s_cmp_eq_u32 s{sRnd}, {NT-3}
    s_cbranch_scc1 L_kswitch
    L_knoiss:
    s_waitcnt lgkmcnt(0)
    ''')
    for j in range(4):
        A(f'v_mfma_f32_16x16x32_bf16 {v4(vS)}, {v4(vKA+4*j)}, {v4(vQ+4*j)}, {"0" if j == 0 else v4(vS)}')
    def pack():
        A(f'v_cvt_pk_bf16_f32 v{t0}, v{vS}, v{vS+1}\nv_cvt_pk_bf16_f32 v{t1}, v{vS+2}, v{vS+3}')
    def unpack():
        A(f'''
        v_lshlrev_b32 v{vS}, 16, v{t0}
        v_and_b32 v{vS+1}, 0xffff0000, v{t0}
        v_lshlrev_b32 v{vS+2}, 16, v{t1}
        v_and_b32 v{vS+3}, 0xffff0000, v{t1}
        ''')
    A(f's_add_u32 s{sRnd}, s{sRnd}, 1\ns_cmp_lt_u32 s{sRnd}, {NT}')
    pack(); unpack()
    for k in range(4): A(f'v_mul_f32 v{vS+k}, s{sSC}, v{vS+k}')
    pack()
    A(f'ds_write_b64 v{vSc}, {v2(t0)}')
    unpack()
    A(f'''
    v_add_u32 v{vSc}, 64, v{vSc}
    v_max3_f32 v{vm}, v{vm}, v{vS}, v{vS+1}
    v_max3_f32 v{vm}, v{vm}, v{vS+2}, v{vS+3}
    s_cbranch_scc1 L_kloop
    ''')
    stamp(4)
    allredrows('v_max_f32', [vm], [t0])
    A(f'''
    v_mul_f32 v{vmL}, s{sL2E}, v{vm}
    v_subrev_u32 v{vSc}, {64*NT}, v{vSc}
    s_mov_b32 s{sRnd}, 0
    s_waitcnt lgkmcnt(0)
    L_vloop:
    ds_read_b64 {v2(t0)}, v{vSc}
    v_add_u32 v{vRd}, s{sCon}, v{vAV}
    v_add_u32 v{vSc}, 64, v{vSc}
    s_add_u32 s{sCon}, s{sCon}, 4096
    s_and_b32 s{sCon}, s{sCon}, {RING*4096-1}
    s_waitcnt lgkmcnt(0)
    ''')
    unpack()
    for k in range(4): A(f'v_fma_f32 v{vS+k}, v{vS+k}, s{sL2E}, -v{vmL}')
    for k in range(4): A(f'v_exp_f32 v{vS+k}, v{vS+k}')
    A(f'v_add_f32 v{t0}, v{vS}, v{vS+1}\nv_add_f32 v{t1}, v{vS+2}, v{vS+3}')
    for k in range(4): A(f'v_cvt_pk_bf16_f32 v{vS+k}, v{vS+k}, v{vS+k}')
    A(f'v_add_f32 v{vl}, v{vl}, v{t0}\nv_add_f32 v{vl}, v{vl}, v{t1}')
    for k in range(4): diag(vBB + 4 * k, vS + k)
    A(f'''
    s_cmp_eq_u32 s{sRnd}, {NT-1}
    s_cbranch_scc1 L_vlast
    s_waitcnt vmcnt(4)
    L_vlastb:
    ''')
    for j in range(4): A(f'ds_read_b128 {v4(vKA+4*j)}, v{vRd} offset:{256*j}')
    A(f's_cmp_ge_u32 s{sRnd}, {NT-2}\ns_cbranch_scc1 L_vnoiss')
    issue(W)
    if late: A(f's_cmp_eq_u32 s{sRnd}, {NT-3}\ns_cbranch_scc1 L_late')
    A(f'''
    L_vnoiss:
    s_add_u32 s{sRnd}, s{sRnd}, 1
    s_cmp_lt_u32 s{sRnd}, {NT}
    ''')
    for j in range(4):
        A(f's_waitcnt lgkmcnt({3-j})')
        A(f'v_mfma_f32_16x16x32_bf16 {v4(vO)}, {v4(vKA+4*j)}, {v4(vBB+4*j)}, {v4(vO)}')
    A(f'''
    s_cbranch_scc1 L_vloop
    s_branch L_post
    L_kswitch:
    s_mov_b32 s{rK}, s{sV}
    s_mov_b32 s{rK+1}, s{sV+1}
    s_mov_b32 s{sT}, s{sFix}
    ''')
    for j in range(4): A(f'v_mov_b32 v{vDo+j}, v{vLin}')
    A(f'''
    s_branch L_knoiss
    L_vlast:
    s_waitcnt vmcnt(0)
    s_branch L_vlastb
    ''')
    if late: A(f'''
    L_late:
    v_mov_b32 v1, {L_CNT}
    v_mov_b32 v2, 1
    s_mov_b64 exec, 1
    ds_add_u32 v1, v2
    s_mov_b64 exec, -1
    s_waitcnt lgkmcnt(0)
    s_branch L_vnoiss
    ''')
    A('L_post:')
    stamp(5)
    allredrows('v_add_f32', [vl], [t0])
    A(f'''
    v_lshlrev_b32 v1, 4, v{vL}
    s_sub_u32 s{sTmp2}, s{sWave}, 4
    v_add_u32 v1, {L_O}, v1
    s_lshl_b32 s{sTmp}, s{sTmp2}, 10
    v_add_u32 v2, s{sTmp}, v1
    ds_write_b128 v2, {v4(vO)}
    v_bfe_u32 v3, v{vL}, 3, 1
    v_lshlrev_b32 v3, 3, v3
    v_add_u32 v6, {L_ML}, v3
    s_lshl_b32 s{sTmp}, s{sTmp2}, 4
    v_add_u32 v2, s{sTmp}, v6
    v_mov_b32 v{vS}, v{vmL}
    v_mov_b32 v{vS+1}, v{vl}
    ds_write_b64 v2, {v2(vS)}
    v_mov_b32 v2, {L_CNT}
    v_mov_b32 v7, 1
    s_waitcnt lgkmcnt(0)
    s_mov_b64 exec, 1
    ds_add_rtn_u32 v7, v2, v7 offset:8
    s_mov_b64 exec, -1
    s_waitcnt lgkmcnt(0)
    v_readfirstlane_b32 s{sTmp}, v7
    s_cmp_eq_u32 s{sTmp}, 3
    s_cbranch_scc0 L_end
    ''')
    stamp(6)
    if ts: A('s_waitcnt lgkmcnt(0)')
    vA = 80
    for i in range(4): A(f'ds_read_b64 {v2(vW+2*i)}, v6 offset:{16*i}')
    for i in range(4): A(f'ds_read_b128 {v4(vA+4*i)}, v1 offset:{1024*i}')
    A(f'''
    v_lshrrev_b32 v2, 5, v{vL}
    v_lshrrev_b32 v3, 2, v3
    v_add_u32 v2, v2, v3
    v_mul_u32_u24 v2, 384, v2
    v_bfe_u32 v3, v{vL}, 4, 1
    v_lshl_add_u32 v2, v3, 7, v2
    v_and_b32 v3, 7, v{vL}
    v_lshl_add_u32 v2, v3, 4, v2
    v_mov_b32 v{vS+2}, s{sTag+2}
    v_mov_b32 v{vS+3}, s{sTag+3}
    s_waitcnt lgkmcnt(4)
    v_max3_f32 v{vS}, v{vW}, v{vW+2}, v{vW+4}
    v_max_f32 v{vS}, v{vS}, v{vW+6}
    v_bfi_b32 v{vS}, v{vFF}, s{sTag}, v{vS}
    ''')
    for i in range(4): A(f'v_sub_f32 v{vW+2*i}, v{vW+2*i}, v{vS}')
    for i in range(4): A(f'v_exp_f32 v{vW+2*i}, v{vW+2*i}')
    A(f'v_mul_f32 v{vS+1}, v{vW}, v{vW+1}')
    for i in range(1, 4): A(f'v_fmac_f32 v{vS+1}, v{vW+2*i}, v{vW+2*i+1}')
    A(f'v_bfi_b32 v{vS+1}, v{vFF}, s{sTag+1}, v{vS+1}')
    A('s_waitcnt lgkmcnt(0)')
    for k in range(4): A(f'v_mul_f32 v{vO+k}, v{vW}, v{vA+k}')
    for i in range(1, 4):
        for k in range(4): A(f'v_fmac_f32 v{vO+k}, v{vW+2*i}, v{vA+4*i+k}')
    tag4(vO)
    A(f'''
    buffer_store_dwordx4 {v4(vO)}, v2, {srd(rWS)}, s{sRec} offen offset:{R_O} sc1
    s_mov_b32 exec_lo, 0x101
    s_mov_b32 exec_hi, 0x101
    buffer_store_dwordx4 {v4(vS)}, v2, {srd(rWS)}, s{sRec} offen offset:{R_O+256} sc1
    ''')
    dump_ts(1)
    A('s_endpgm')
    vWD, vG, vWO, vP, vYG = 64, 112, 128, 160, 184
    def frange():
        A(f'''
        v_lshrrev_b32 v1, 3, v{vL}
        v_and_b32 v2, 7, v{vL}
        s_and_b32 s{sA}, s{sS}, 1
        s_sub_u32 s{sB}, 5, s{sA}
        s_mul_i32 s{sA}, s{sA}, 20
        s_lshr_b32 s{sTmp}, s{sS}, 1
        s_mul_i32 s{sTmp}, s{sTmp}, 36
        s_add_u32 s{sA}, s{sA}, s{sTmp}
        v_cmp_gt_u32 vcc, s{sB}, v1
        ''')
    A('L_g1:')
    if nomid: A('s_branch L_fin0')
    frange()
    A(f'''
    v_cndmask_b32 v7, 0, v1, vcc
    v_lshlrev_b32 v7, 4, v7
    v_lshl_add_u32 v7, v2, 13, v7
    s_lshl_b32 s{sTmp}, s{sA}, 2
    s_add_u32 s{sTmp}, s{sTmp}, s{sGrp}
    s_add_u32 s{sTmp2}, s{sTmp}, {8*REC}
    s_mov_b32 s{sCnt}, {SPIN}
    L_pollgu:
    s_sleep {gusleep}
    ''')
    for hf, so in enumerate((sTmp, sTmp2)):
        for mat in range(2):
            A(f'buffer_load_dwordx4 {v4(vG+8*hf+4*mat)}, v7, {srd(rWS)}, s{so} offen offset:{R_GU+1152*mat} sc1')
    A('s_waitcnt vmcnt(0)')
    check_tag([vG + 4 * k for k in range(4)], vT + 1, 'L_pollgu')
    for k in range(8): A(f'v_add_f32 v{vG+k}, v{vG+k}, v{vG+8+k}')
    allred8('v_add_f32', range(vG, vG + 8))
    for k in range(8): bf16r(vG + k, vG + k)
    for k in range(4): A(f'v_mul_f32 v{vG+k}, s{sL2E}, v{vG+k}')
    for k in range(4): A(f'v_exp_f32 v{vG+k}, -v{vG+k}')
    for k in range(4): A(f'v_add_f32 v{vG+k}, 1.0, v{vG+k}')
    for k in range(4): A(f'v_rcp_f32 v{vG+k}, v{vG+k}')
    for k in range(4): bf16r(vG + k, vG + k)
    for k in range(4): A(f'v_mul_f32 v{vG+k}, v{vG+k}, v{vG+4+k}')
    for k in range(4): A(f'v_cvt_pk_bf16_f32 v{vG+k}, v{vG+k}, v{vG+k}')
    A(f'''
    v_lshlrev_b32 v6, 4, v1
    v_add_u32 v6, {L_H}, v6
    ds_write_b128 v6, {v4(vG)}
    v_mov_b32 v6, {L_CNT}
    v_mov_b32 v7, 1
    s_waitcnt lgkmcnt(0)
    ds_write_b32 v6, v7 offset:4
    ''')
    A('L_wait:')
    if nomid: A('s_branch L_fin0')
    frange()
    mksrd(rW, sDOWN, 4608*1152)
    mksrd(rW2, sWO, 4096*1152)
    sWDo, sWOo, sOo, sYGo = 32, 33, 34, 35
    A(f'''
    v_mul_u32_u24 v4, 4608, v1
    v_lshl_add_u32 v4, v2, 4, v4
    v_mov_b32 v6, {OOB:#x}
    v_cndmask_b32 v4, v6, v4, vcc
    s_mul_i32 s{sTmp}, s{sHK}, 288
    s_add_u32 s{sTmp}, s{sTmp}, s{sA}
    s_mul_i32 s{sTmp}, s{sTmp}, 1152
    s_lshl_b32 s{sTmp2}, s{sWave}, 7
    s_add_u32 s{sWDo}, s{sTmp}, s{sTmp2}
    v_mul_u32_u24 v5, 1152, v1
    v_lshl_add_u32 v5, v2, 4, v5
    s_lshl_b32 s{sTmp}, s{sHK}, 2
    s_add_u32 s{sTmp}, s{sTmp}, s{sWave}
    s_mul_i32 s{sTmp}, s{sTmp}, {64*1152}
    s_lshl_b32 s{sTmp2}, s{sS}, 7
    s_add_u32 s{sWOo}, s{sTmp}, s{sTmp2}
    v_bfe_u32 v3, v{vL}, 4, 1
    v_lshlrev_b32 v3, 4, v3
    v_lshl_add_u32 v3, v2, 5, v3
    v_and_b32 v6, 15, v{vL}
    v_lshlrev_b32 v6, 3, v6
    buffer_load_dwordx2 {v2(vQ)}, v6, {srd(rX)}, s{sTmp2} offen
    v_lshlrev_b32 v{vQ+2}, 13, v2
    v_lshl_add_u32 v{vQ+3}, v1, 4, v{vQ+2}
    v_lshrrev_b32 v{vQ+4}, 4, v{vL}
    v_lshlrev_b32 v{vQ+4}, 13, v{vQ+4}
    v_lshl_add_u32 v{vQ+4}, v6, 1, v{vQ+4}
    s_mul_i32 s{sOo}, s{sWave}, 384
    s_add_u32 s{sOo}, s{sOo}, s{sGrp}
    s_lshl_b32 s{sYGo}, s{sWave}, 15
    s_add_u32 s{sYGo}, s{sYGo}, s{sGrp}
    s_lshl_b32 s{sTmp}, s{sS}, 8
    s_add_u32 s{sYGo}, s{sYGo}, s{sTmp}
    s_add_u32 s{sYGo}, s{sYGo}, {R_YG}
    v_lshlrev_b32 v6, 4, v1
    v_add_u32 v6, {L_H}, v6
    v_mov_b32 v7, {L_CNT}
    s_mov_b32 s{sCnt}, {SPIN*4}
    ''')
    stamp(5)
    A(f'''
    L_pollh:
    s_sleep {latesleep}
    ds_read_b32 v{vT}, v7 offset:4
    s_waitcnt lgkmcnt(0)
    v_readfirstlane_b32 s{sTmp}, v{vT}
    s_cmp_lg_u32 s{sTmp}, 0
    s_cbranch_scc1 L_goth
    s_sub_u32 s{sCnt}, s{sCnt}, 1
    s_cbranch_scc0 L_pollh
    L_goth:
    ds_read_b128 {v4(vG)}, v6
    s_waitcnt lgkmcnt(0)
    ''')
    hb = [vB, vB2, vS, vG + 8]
    for k in range(4): diag(hb[k], vG + k)
    if late: A(f'''
    L_polll:
    s_sleep {latesleep}
    ds_read_b32 v{vT}, v7
    s_waitcnt lgkmcnt(0)
    v_readfirstlane_b32 s{sTmp}, v{vT}
    s_cmp_ge_u32 s{sTmp}, {laten}
    s_cbranch_scc1 L_gotl
    s_sub_u32 s{sCnt}, s{sCnt}, 1
    s_cbranch_scc0 L_polll
    L_gotl:
    ''')
    for ci in range(2):
        for j in range(4):
            A(f'buffer_load_dwordx4 {v4(vWD+16*ci+4*j)}, v4, {srd(rW)}, s{sWDo} offen offset:{512*ci+1152*j} {wflag}')
    A(f's_cmp_eq_u32 s{sWave}, 3\ns_cbranch_scc0 L_nowd\ns_add_u32 s{sWDo}, s{sWDo}, 640')
    for j in range(4):
        A(f'buffer_load_dwordx4 {v4(vWD+32+4*j)}, v4, {srd(rW)}, s{sWDo} offen offset:{1152*j} {wflag}')
    A(f'''
    L_nowd:
    s_cmp_ge_u32 s{sS}, 9
    s_cselect_b32 s{rW2+2}, 0, s{rW2+2}
    ''')
    for i in range(8):
        A(f'buffer_load_dwordx4 {v4(vWO+4*i)}, v5, {srd(rW2)}, s{sWOo} offen {wflag}')
        if i < 7: A(f's_add_u32 s{sWOo}, s{sWOo}, 9216')
    A(f'''
    s_lshl_b32 s{sTmp}, s{sWave}, 8
    s_add_u32 s{sTmp}, s{sTmp}, s{sRec}
    s_add_u32 s{sTmp}, s{sTmp}, {R_YG}
    s_waitcnt vmcnt(8)
    ''')
    for ci in range(3):
        if ci == 2: A(f's_cmp_eq_u32 s{sWave}, 3\ns_cbranch_scc0 L_g1done')
        for j in range(4):
            A(f'v_mfma_f32_16x16x32_bf16 {v4(vD)}, {v4(hb[j])}, {v4(vWD+16*ci+4*j)}, {"0" if j == 0 else v4(vD)}')
        diagadd(vO); tag4(vO)
        A(f's_mov_b64 exec, 0x00ff00ff\nbuffer_store_dwordx4 {v4(vO)}, v3, {srd(rWS)}, s{sTmp} offen offset:{(0, 1024, 1280)[ci]} sc1\ns_mov_b64 exec, -1')
    A(f'''
    L_g1done:
    s_cmp_ge_u32 s{sS}, 9
    s_cbranch_scc1 L_fin0
    s_add_u32 s{sTmp2}, s{sOo}, {8*REC}
    s_mov_b32 s{sCnt}, {SPIN}
    s_setprio 3
    L_pollo:
    ''')
    if osleep: A(f's_sleep {osleep}')
    A(f'''
    buffer_load_dwordx4 {v4(vP+16)}, v{vQ+2}, {srd(rWS)}, s{sOo} offen offset:{R_O+256} sc1
    buffer_load_dwordx4 {v4(vP+20)}, v{vQ+2}, {srd(rWS)}, s{sTmp2} offen offset:{R_O+256} sc1
    buffer_load_dwordx4 {v4(vP)}, v{vQ+3}, {srd(rWS)}, s{sOo} offen offset:{R_O} sc1
    buffer_load_dwordx4 {v4(vP+4)}, v{vQ+3}, {srd(rWS)}, s{sOo} offen offset:{R_O+128} sc1
    buffer_load_dwordx4 {v4(vP+8)}, v{vQ+3}, {srd(rWS)}, s{sTmp2} offen offset:{R_O} sc1
    buffer_load_dwordx4 {v4(vP+12)}, v{vQ+3}, {srd(rWS)}, s{sTmp2} offen offset:{R_O+128} sc1
    buffer_load_dwordx4 {v4(vYG)}, v{vQ+4}, {srd(rWS)}, s{sYGo} offen sc1
    s_waitcnt vmcnt(0)
    ''')
    check_tag([vP + 4 * k for k in range(7)], vT + 1, 'L_pollo')
    stamp(6)
    mA, lA, mB, lB = vP + 16, vP + 17, vP + 20, vP + 21
    A(f'v_max_f32 v{vT}, v{mA}, v{mB}')
    allred8('v_max_f32', [vT])
    A(f'''
    v_sub_f32 v{mA}, v{mA}, v{vT}
    v_sub_f32 v{mB}, v{mB}, v{vT}
    v_exp_f32 v{mA}, v{mA}
    v_exp_f32 v{mB}, v{mB}
    v_mul_f32 v{lA}, v{mA}, v{lA}
    v_fmac_f32 v{lA}, v{mB}, v{lB}
    ''')
    for k in range(8): A(f'v_mul_f32 v{vP+k}, v{mA}, v{vP+k}')
    for k in range(8): A(f'v_fmac_f32 v{vP+k}, v{mB}, v{vP+8+k}')
    allred8('v_add_f32', [lA] + list(range(vP, vP + 8)))
    A(f'v_rcp_f32 v{lA}, v{lA}')
    for k in range(8): A(f'v_mul_f32 v{vP+k}, v{lA}, v{vP+k}')
    for k in range(8): A(f'v_cvt_pk_bf16_f32 v{vP+k}, v{vP+k}, v{vP+k}')
    for k in range(8):
        bb = vB if k % 2 == 0 else vB2
        diag(bb, vP + k)
        A(f'v_mfma_f32_16x16x32_bf16 {v4(vD)}, {v4(bb)}, {v4(vWO+4*k)}, {"0" if k == 0 else v4(vD)}')
    allredrows('v_add_f32', range(vYG, vYG + 4), range(vP + 8, vP + 12))
    A(f'''
    v_lshrrev_b32 v6, 5, v{vL}
    v_lshl_add_u32 v6, v6, 8, v3
    s_lshl_b32 s{sTmp}, s{sWave}, 9
    s_add_u32 s{sTmp}, s{sTmp}, {L_Y}
    v_add_u32 v6, s{sTmp}, v6
    v_and_b32 v7, 15, v{vL}
    v_lshlrev_b32 v7, 4, v7
    s_lshl_b32 s{sTmp}, s{sWave}, 8
    s_add_u32 s{sTmp}, s{sTmp}, {L_YG}
    v_add_u32 v5, s{sTmp}, v7
    s_mov_b64 exec, 0xffff
    ds_write_b128 v5, {v4(vYG)}
    s_mov_b32 exec_lo, 0x00ff00ff
    s_mov_b32 exec_hi, 0xff00ff00
    ds_write_b128 v6, {v4(vD)}
    s_mov_b64 exec, -1
    v_lshlrev_b32 v6, 4, v{vL}
    v_add_u32 v6, {L_Y}, v6
    s_waitcnt lgkmcnt(0)
    s_barrier
    s_cmp_eq_u32 s{sWave}, 0
    s_cbranch_scc0 L_end
    ds_read_b128 {v4(vO)}, v6
    ds_read_b128 {v4(vS)}, v6 offset:1024
    ds_read_b128 {v4(vB)}, v6 offset:2048
    v_and_b32 v5, 31, v{vL}
    v_lshlrev_b32 v5, 4, v5
    v_cmp_lt_u32 vcc, 15, v{vL}
    s_add_u32 s{sTmp}, s{sRec}, {R_Y2}
    s_waitcnt lgkmcnt(0)
    ''')
    for k in range(4): A(f'v_add_f32 v{vO+k}, v{vO+k}, v{vS+k}')
    allredrows('v_add_f32', list(range(vO, vO + 4)) + list(range(vB, vB + 4)), list(range(vS, vS + 4)) + list(range(vB2, vB2 + 4)))
    for k in range(4): A(f'v_cndmask_b32 v{vO+k}, v{vO+k}, v{vB+k}, vcc')
    tag4(vO)
    A(f'''
    s_mov_b32 exec_hi, 0
    buffer_store_dwordx4 {v4(vO)}, v5, {srd(rWS)}, s{sTmp} offen sc1
    s_mov_b64 exec, -1
    s_cmp_eq_u32 s{sHK}, s{sS}
    s_cbranch_scc0 L_fin0
    ''')
    A(f'''
    v_lshrrev_b32 v6, 4, v{vL}
    v_lshl_add_u32 v6, v6, 17, v7
    s_lshl_b32 s{sA}, s{sS}, 13
    s_add_u32 s{sA}, s{sA}, {R_Y2}
    s_mov_b32 s{sCnt}, {SPIN}
    ''')
    mksrd(rW, sOUT, 1152)
    mksrd(rX, sWS, 4)
    A(f'L_polly:\ns_mov_b32 s{sTmp}, s{sA}')
    for j in range(4):
        A(f'buffer_load_dwordx4 {v4(vWD+4*j)}, v6, {srd(rWS)}, s{sTmp} offen sc1')
        A(f'buffer_load_dwordx4 {v4(vWD+16+4*j)}, v6, {srd(rWS)}, s{sTmp} offen offset:256 sc1')
        if j < 3: A(f's_add_u32 s{sTmp}, s{sTmp}, {64*REC}')
    A('s_waitcnt vmcnt(0)')
    check_tag([vWD + 4 * j for j in range(8)], vT + 1, 'L_polly')
    for j in range(1, 4):
        for k in range(4): A(f'v_add_f32 v{vWD+k}, v{vWD+k}, v{vWD+4*j+k}')
        for k in range(4): A(f'v_add_f32 v{vWD+16+k}, v{vWD+16+k}, v{vWD+16+4*j+k}')
    rs = list(range(vWD, vWD + 4)) + list(range(vWD + 16, vWD + 20))
    allredrows('v_add_f32', rs, list(range(vWD + 4, vWD + 12)))
    for r in rs: bf16r(r, r)
    A(f'''
    v_lshlrev_b32 v{vS}, 16, v{vQ}
    v_and_b32 v{vS+1}, 0xffff0000, v{vQ}
    v_lshlrev_b32 v{vS+2}, 16, v{vQ+1}
    v_and_b32 v{vS+3}, 0xffff0000, v{vQ+1}
    ''')
    for k in range(4): A(f'v_add_f32 v{vS+k}, v{vS+k}, v{vWD+k}')
    for k in range(4): bf16r(vS + k, vS + k)
    for k in range(4): A(f'v_add_f32 v{vS+k}, v{vS+k}, v{vWD+16+k}')
    A(f'''
    v_cvt_pk_bf16_f32 v{vS}, v{vS}, v{vS+1}
    v_cvt_pk_bf16_f32 v{vS+1}, v{vS+2}, v{vS+3}
    v_lshrrev_b32 v7, 1, v7
    ''')
    if diagT: A(f'L_diag:\ns_memrealtime s[92:93]\ns_waitcnt lgkmcnt(0)\ns_sub_u32 s92, s92, s90\ns_cmp_lt_u32 s92, {diagT*100}\ns_cbranch_scc1 L_diag')
    A(f'''
    s_lshl_b32 s{sTmp}, s{sS}, 7
    s_mov_b64 exec, 0xffff
    buffer_store_dwordx2 {v2(vS)}, v7, {srd(rW)}, s{sTmp} offen
    s_cmp_eq_u32 s2, 0
    s_cbranch_scc0 L_fin0
    s_mov_b64 exec, 1
    v_mov_b32 v1, s{sTag}
    buffer_store_dword v1, v7, {srd(rX)}, 0 offen sc1
    L_fin0:
    ''')
    if ts:
        A(f's_cmp_eq_u32 s{sWave}, 0\ns_cbranch_scc0 L_end')
        dump_ts(0)
    A('L_end:\ns_endpgm')
    body, pads = fix('\n'.join(o))
    src = HEADER + f'''; Generated by my own generator script (hand-designed instruction stream); W={W}
; @launch grid=(256,1,1) block=(512,1,1) lds={LDS_BYTES}
.amdgcn_target "amdgcn-amd-amdhsa--gfx950"
.text
.globl {NAME}
.p2align 8
.type {NAME},@function
{body}
.section .rodata,"a"
.p2align 6
.amdhsa_kernel {NAME}
  .amdhsa_next_free_vgpr {NV}
  .amdhsa_next_free_sgpr 96
  .amdhsa_accum_offset {(NV+3)//4*4}
  .amdhsa_group_segment_fixed_size 0
  .amdhsa_kernarg_size 96
  .amdhsa_user_sgpr_count 2
  .amdhsa_user_sgpr_kernarg_segment_ptr 1
  .amdhsa_system_sgpr_workgroup_id_x 1
  .amdhsa_float_denorm_mode_32 3
.end_amdhsa_kernel
'''
    return src, NV, pads

if __name__ == '__main__':
    import argparse, ast
    ap = argparse.ArgumentParser()
    ap.add_argument('-o', default='parallel_sum__gqa_block_cached__glu_gated_glu__decode.s')
    ap.add_argument('kw', nargs='*')
    a = ap.parse_args()
    kw = {}
    for x in a.kw:
        k, v = x.split('=', 1)
        try: kw[k] = ast.literal_eval(v)
        except Exception: kw[k] = v
    src, nv, pads = gen(**kw)
    open(a.o, 'w').write(src)
    print('vgprs', nv, 'pad states', pads, 'lines', src.count('\n'))
```
